```python
import torch

def _softmax(x, axis=-1):
    return torch.softmax(x, dim=axis)

def _gelu(x):
    return torch.nn.functional.gelu(x, approximate='tanh')

def _silu(x):
    return torch.nn.functional.silu(x)

def _sigmoid(x):
    return torch.sigmoid(x)

def _layernorm(x, axis=-1, eps=1e-05):
    m = x.mean(dim=axis, keepdim=True)
    v = x.var(dim=axis, keepdim=True, unbiased=False)
    return (x - m) / torch.sqrt(v + eps)

def _scatter_add(tgt, idx, src, axis=0):
    return tgt.clone().index_add_(axis, idx, src)

def _segment_sum(src, seg, n):
    out = torch.zeros((n,) + src.shape[1:], dtype=src.dtype)
    return out.index_add_(0, seg, src)

def _pad(x, pw):
    flat = tuple((v for pair in reversed(pw) for v in pair))
    return torch.nn.functional.pad(x, flat)
kernel_name = 'interleave_layers__memory_aug_recurrent_mem_tr__glu_gated_glu__prompt'

def setup_inputs():

    _w = lambda a: (lambda t: t.to(torch.bfloat16) if t.is_floating_point() else t)(torch.as_tensor(a))

    def _A_setup():
        B, S, Dm = (1, 2048, 640)
        H, Dh = (32, 192)
        M, seg = (8, 32)
        seg = min(seg, S)
        S = S // seg * seg
        return {'x': _w((lambda *s: torch.randn(*s, dtype=torch.bfloat16) * 0.05)(B, S, Dm)), 'mem0': _w((lambda *s: torch.randn(*s, dtype=torch.bfloat16) * 0.8)(B, M, Dm)), 'Wq': _w((lambda *s: torch.randn(*s, dtype=torch.bfloat16) * 0.8)(Dm, H, Dh) * Dm ** (-0.5)), 'Wk': _w((lambda *s: torch.randn(*s, dtype=torch.bfloat16) * 0.8)(Dm, H, Dh) * Dm ** (-0.5)), 'Wv': _w((lambda *s: torch.randn(*s, dtype=torch.bfloat16) * 0.8)(Dm, H, Dh) * Dm ** (-0.5)), 'Wo': _w((lambda *s: torch.randn(*s, dtype=torch.bfloat16) * 0.8)(H, Dh, Dm) * (H * Dh) ** (-0.5)), 'seg_len': seg}
    _A_in = _A_setup()

    def _B_setup():
        B, S, D, F = (1, 2048, 640, 1536)
        return {'x': _w((lambda *s: torch.randn(*s, dtype=torch.bfloat16) * 0.05)(B, S, D)), 'w_gate': _w((lambda *s: torch.randn(*s, dtype=torch.bfloat16) * 0.05)(D, F)), 'w_up': _w((lambda *s: torch.randn(*s, dtype=torch.bfloat16) * 0.05)(D, F)), 'w_down': _w((lambda *s: torch.randn(*s, dtype=torch.bfloat16) * 0.05)(F, D))}
    _B_in = _B_setup()
    return {'A_x': _A_in['x'], 'A_mem0': _A_in['mem0'], 'A_Wq': _A_in['Wq'], 'A_Wk': _A_in['Wk'], 'A_Wv': _A_in['Wv'], 'A_Wo': _A_in['Wo'], 'A_seg_len': _A_in['seg_len'], 'B_x': _B_in['x'], 'B_w_gate': _B_in['w_gate'], 'B_w_up': _B_in['w_up'], 'B_w_down': _B_in['w_down']}

def reference(A_x, A_mem0, A_Wq, A_Wk, A_Wv, A_Wo, A_seg_len, B_x, B_w_gate, B_w_up, B_w_down):

    def _A_ref(x, mem0, Wq, Wk, Wv, Wo, seg_len):
        B, S, Dm = x.shape
        H, Dh = (Wq.shape[1], Wq.shape[2])
        M = mem0.shape[1]
        scale = Dh ** (-0.5)
        n_seg = S // seg_len
        L = M + seg_len
        idx = torch.arange(L)
        mask = (idx[:, None] < M) | (idx[:, None] >= idx[None, :])
        mem = mem0
        outs = []
        for s in range(n_seg):
            xs = x[:, s * seg_len:(s + 1) * seg_len, :].clone()
            h = torch.concatenate([mem, xs], axis=1)
            q = torch.einsum('btd,dhe->bhte', h, Wq)
            k = torch.einsum('btd,dhe->bhte', h, Wk)
            v = torch.einsum('btd,dhe->bhte', h, Wv)
            scores = torch.einsum('bhqe,bhke->bhqk', q, k) * scale
            scores = torch.where(mask[None, None], scores, -1000000000.0)
            p = _softmax(scores, axis=-1)
            o = torch.einsum('bhqk,bhke->bhqe', p, v)
            o = torch.einsum('bhte,hed->btd', o, Wo)
            mem = o[:, :M, :].clone()
            outs.append(o[:, M:, :])
        return torch.concatenate(outs, axis=1)

    def _B_ref(x, w_gate, w_up, w_down):
        g = torch.einsum('bsd,df->bsf', x, w_gate)
        u = torch.einsum('bsd,df->bsf', x, w_up)
        h = _sigmoid(g) * u
        return torch.einsum('bsf,fd->bsd', h, w_down)
    x = A_x
    x = x + _A_ref(_layernorm(x, axis=-1), A_mem0, A_Wq, A_Wk, A_Wv, A_Wo, A_seg_len)
    x = x + _B_ref(_layernorm(x, axis=-1), B_w_gate, B_w_up, B_w_down)
    x = x + _A_ref(_layernorm(x, axis=-1), A_mem0, A_Wq, A_Wk, A_Wv, A_Wo, A_seg_len)
    x = x + _B_ref(_layernorm(x, axis=-1), B_w_gate, B_w_up, B_w_down)
    return x
```

```python
import re
import sys

sys.setrecursionlimit(100000)

SPECIAL = {'vcc': (106, 2), 'vcc_lo': (106, 1), 'vcc_hi': (107, 1), 'm0': (124, 1),
           'exec': (126, 2), 'exec_lo': (126, 1), 'exec_hi': (127, 1)}


class Reg:
    def __init__(self, f, i, n=1):
        self.f, self.i, self.n = f, i, n

    def __str__(self):
        if self.n == 1:
            return f'{self.f}{self.i}'
        return f'{self.f}[{self.i}:{self.i + self.n - 1}]'

    __repr__ = __str__

    def __getitem__(self, k):
        if isinstance(k, slice):
            a = k.start or 0
            b = self.n if k.stop is None else k.stop
            assert 0 <= a < b <= self.n, (self, k)
            return Reg(self.f, self.i + a, b - a)
        assert 0 <= k < self.n, (self, k)
        return Reg(self.f, self.i + k, 1)

    def sub(self, a, n):
        assert 0 <= a and a + n <= self.n, (self, a, n)
        return Reg(self.f, self.i + a, n)

    def __len__(self):
        return self.n


class Alloc:
    def __init__(self, f, lo, hi):
        self.f, self.lo, self.hi = f, lo, hi
        self.used = [False] * (hi + 1)
        self.high = lo - 1

    def get(self, n=1, align=None):
        if align is None:
            align = 1 if n == 1 else (2 if self.f != 's' else (2 if n < 4 else 4))
        i = self.lo
        i = (i + align - 1) // align * align
        while i + n <= self.hi:
            if not any(self.used[i:i + n]):
                for k in range(i, i + n):
                    self.used[k] = True
                self.high = max(self.high, i + n - 1)
                return Reg(self.f, i, n)
            i += align
        raise RuntimeError(f'out of {self.f} registers (want {n})')

    def free(self, *regs):
        for r in regs:
            assert r.f == self.f
            for k in range(r.i, r.i + r.n):
                assert self.used[k], ('double free', r)
                self.used[k] = False

    def nfree(self):
        return sum(1 for k in range(self.lo, self.hi) if not self.used[k])


_RANGE = re.compile(r'^(-|abs\(|-abs\(|\|)?([vas])\[(\d+):(\d+)\]\)?\|?$')
_ONE = re.compile(r'^(-|abs\(|-abs\(|\|)?([vas])(\d+)\)?\|?$')


def regs_of(tok):
    tok = tok.strip()
    m = _RANGE.match(tok)
    if m:
        return {(m.group(2), k) for k in range(int(m.group(3)), int(m.group(4)) + 1)}
    m = _ONE.match(tok)
    if m:
        return {(m.group(2), int(m.group(3)))}
    if tok in SPECIAL:
        b, n = SPECIAL[tok]
        return {('s', b + k) for k in range(n)}
    return set()


def split_ops(rest):
    out, depth, cur = [], 0, ''
    for ch in rest:
        if ch in '[(':
            depth += 1
        if ch in '])':
            depth -= 1
        if ch == ',' and depth == 0:
            out.append(cur.strip())
            cur = ''
        else:
            cur += ch
    if cur.strip():
        out.append(cur.strip())
    mods = ''
    if out:
        last = out[-1]
        depth = 0
        for k, ch in enumerate(last):
            if ch in '[(':
                depth += 1
            if ch in '])':
                depth -= 1
            if ch == ' ' and depth == 0:
                mods = last[k + 1:]
                out[-1] = last[:k]
                break
    return out, mods


TRANS = re.compile(r'^v_(exp|log|rcp|rsq|sqrt|sin|cos)_')
VCC = {('s', 106), ('s', 107)}
EXEC = {('s', 126), ('s', 127)}
M0 = {('s', 124)}


class Ins:
    __slots__ = ('text', 'kind', 'mn', 'ops', 'mods', 'defs', 'uses', 'cls', 'target', 'passes',
                 'srcc', 'srcab', 'ws', 'dpp', 'vm', 'lgkm', 'lds_dma', 'data', 'wide')

    def __init__(self, text):
        self.text = text
        t = text.split(';')[0].strip()
        self.defs, self.uses = set(), set()
        self.cls = None
        self.target = None
        self.passes = 0
        self.srcc = set()
        self.srcab = set()
        self.ws = 1
        self.dpp = False
        self.vm = False
        self.lgkm = 0
        self.lds_dma = False
        self.data = set()
        self.wide = False
        if not t:
            self.kind = 'blank'
            self.mn = ''
            return
        if t.endswith(':'):
            self.kind = 'label'
            self.mn = t[:-1]
            return
        if t.startswith('.'):
            self.kind = 'dir'
            self.mn = t
            return
        self.kind = 'ins'
        p = t.split(None, 1)
        mn = p[0]
        self.mn = mn
        ops, mods = split_ops(p[1]) if len(p) > 1 else ([], '')
        self.ops, self.mods = ops, mods
        R = [regs_of(o) for o in ops]
        allr = set().union(*R) if R else set()
        rest = set().union(*R[1:]) if len(R) > 1 else set()
        if mn.startswith('v_mfma') or mn.startswith('v_smfmac'):
            self.cls = 'mfma'
            self.defs = R[0]
            if mn.startswith('v_smfmac'):
                self.srcab = R[1] | R[2] | R[3]
                self.srcc = R[0]
            else:
                self.srcab = R[1] | R[2]
                self.srcc = R[3]
            self.uses = self.srcab | self.srcc
            if '32x32' in mn:
                self.passes = 8
            elif '16x16' in mn:
                self.passes = 4
            else:
                raise ValueError(mn)
            assert 'f32_16x16x4_f32' not in mn and '32x32x2_f32' not in mn
        elif mn.startswith('v_'):
            self.cls = 'valu'
            self.dpp = ('_dpp' in mn) or bool(re.search(r'row_|quad_perm|wave_', mods))
            if re.match(r'v_(add|sub|subrev|addc|subb|subbrev)_co_', mn) or mn.startswith('v_div_scale') \
                    or mn.startswith('v_mad_u64') or mn.startswith('v_mad_i64'):
                self.defs = R[0] | R[1]
                self.uses = set().union(*R[2:])
            elif mn.startswith('v_cmpx'):
                raise ValueError('v_cmpx not supported')
            elif 'permlane' in mn and 'swap' in mn:
                self.defs = allr
                self.uses = allr
            elif mn == 'v_nop':
                pass
            else:
                self.defs = R[0]
                self.uses = rest
                if re.match(r'v_(fmac|pk_fmac|dot2c|dot4c|fmamk|writelane|mac)', mn) or self.dpp \
                        or 'op_sel' in mods or 'sdwa' in mn:
                    self.uses = self.uses | R[0]
                if mn.startswith('v_div_fmas'):
                    self.uses |= VCC
            self.uses = self.uses | EXEC if False else self.uses
        elif mn.startswith('ds_'):
            self.cls = 'ds'
            self.lgkm = 1
            if re.match(r'ds_(read|bpermute|permute|swizzle)', mn) or '_rtn' in mn:
                self.defs = R[0]
                self.uses = rest
            else:
                self.uses = allr
                self.data = rest
        elif mn.startswith('buffer_') or mn.startswith('global_'):
            self.cls = 'vmem'
            self.vm = True
            if mn in ('buffer_inv', 'buffer_wbl2'):
                pass
            elif 'lds' in mods.split() or 'load_lds' in mn:
                self.lds_dma = True
                self.uses = allr | M0
            elif '_load' in mn:
                self.defs = R[0]
                self.uses = rest
            elif '_atomic' in mn:
                self.uses = allr
                if 'sc0' in mods.split():
                    self.defs = R[0]
            else:
                self.uses = allr
                self.data = R[0] if mn.startswith('buffer_') else R[1]
                self.wide = mn.endswith('x3') or mn.endswith('x4')
        elif mn.startswith('s_'):
            self.cls = 'salu'
            if mn == 's_nop':
                self.ws = int(ops[0], 0) + 1
            elif mn in ('s_waitcnt', 's_barrier', 's_endpgm', 's_sleep', 's_setprio'):
                pass
            elif mn == 's_branch' or mn.startswith('s_cbranch'):
                self.target = ops[0]
            elif mn.startswith('s_cmp') or mn.startswith('s_bitcmp'):
                self.uses = allr
            elif mn.startswith('s_load') or mn.startswith('s_buffer_load') or mn in ('s_memtime', 's_memrealtime'):
                self.cls = 'smem'
                self.defs = R[0]
                self.uses = rest
                self.lgkm = 1
            elif 'saveexec' in mn:
                self.defs = R[0] | EXEC
                self.uses = rest | EXEC
            else:
                self.defs = R[0] if R else set()
                self.uses = rest
                if re.match(r's_(addk|mulk|cmov|bitset)', mn):
                    self.uses = self.uses | R[0]
        else:
            raise ValueError('unknown instruction: ' + text)


def _vg(s):
    return {r for r in s if r[0] != 's'}


def _sg(s):
    return {r for r in s if r[0] == 's'}


def required_ws(p, c):
    need = 0
    if p.cls == 'valu':
        pv, ps = _vg(p.defs), _sg(p.defs)
        if c.cls == 'mfma' and pv & c.uses:
            need = max(need, 2)
        if c.cls == 'valu':
            if pv & c.uses:
                if c.mn.startswith('v_readlane') or c.mn.startswith('v_readfirstlane'):
                    need = max(need, 1)
                if c.dpp or 'permlane' in c.mn:
                    need = max(need, 2)
                if TRANS.match(p.mn):
                    need = max(need, 1)
                if 'op_sel' in p.mods or 'sdwa' in p.mn:
                    need = max(need, 1)
            if ps & c.uses:
                if c.mn.startswith('v_readlane') or c.mn.startswith('v_writelane') or c.mn.startswith('v_div_fmas'):
                    need = max(need, 4)
                else:
                    need = max(need, 2)
        if c.cls == 'vmem' and ps & c.uses:
            need = max(need, 5)
        if c.cls in ('salu', 'smem') and ps & c.uses:
            need = max(need, 1)
    elif p.cls == 'mfma':
        big = {4: 8, 8: 12}[p.passes]
        if c.cls == 'mfma':
            if p.defs & c.srcab:
                need = max(need, big)
            if p.defs & c.srcc:
                if not (p.defs == c.srcc and p.mn == c.mn):
                    need = max(need, {4: 6, 8: 10}[p.passes])
            elif p.defs & c.defs:
                need = max(need, {4: 6, 8: 10}[p.passes])
        elif c.cls in ('valu', 'vmem', 'ds'):
            if p.defs & (c.uses | c.defs):
                need = max(need, big)
            if c.cls == 'valu' and p.srcc & c.defs:
                need = max(need, {4: 3, 8: 7}[p.passes])
    elif p.cls == 'vmem':
        if p.wide and p.data & c.defs:
            need = max(need, 2 if c.cls in ('valu', 'mfma') else 1)
    elif p.cls == 'salu':
        if (p.defs & M0) and c.lds_dma:
            need = max(need, 1)
    return need


class Prog:
    def __init__(self):
        self.ins = []
        self._uid = 0

    def __call__(self, text):
        for line in text.split('\n'):
            line = line.strip()
            if line:
                self.ins.append(Ins(line))

    def label(self, name):
        self.ins.append(Ins(name + ':'))

    def uid(self, base):
        self._uid += 1
        return f'{base}_{self._uid}'

    def extend(self, other):
        self.ins.extend(other.ins)

    def _cfg(self):
        ins = self.ins
        labels = {x.mn: i for i, x in enumerate(ins) if x.kind == 'label'}
        succ = [[] for _ in ins]
        for i, x in enumerate(ins):
            if x.kind == 'ins' and x.mn == 's_endpgm':
                continue
            if x.kind == 'ins' and x.target is not None:
                succ[i].append(labels[x.target])
                if x.mn == 's_branch':
                    continue
            if i + 1 < len(ins):
                succ[i].append(i + 1)
        pred = [[] for _ in ins]
        for i, s in enumerate(succ):
            for j in s:
                pred[j].append(i)
        return succ, pred

    def fix_hazards(self, window=13):
        total = 0
        while True:
            succ, pred = self._cfg()
            ins = self.ins
            add = {}
            for i, c in enumerate(ins):
                if c.kind != 'ins' or c.cls is None:
                    continue
                worst = 0
                stack = [(j, 0, 0, 0) for j in pred[i]]
                seen = set()
                while stack:
                    j, d, m, k = stack.pop()
                    if (j, d, m, k) in seen:
                        continue
                    seen.add((j, d, m, k))
                    p = ins[j]
                    if p.kind == 'ins':
                        need = required_ws(p, c)
                        eff = max(d, 3 * m + k) if p.cls == 'mfma' else d
                        if need > eff:
                            worst = max(worst, need - eff)
                        a = add.get(j, 0)
                        d += p.ws + a
                        if p.cls == 'mfma':
                            m += 1
                        elif m == 0:
                            k += p.ws + a
                    if d < window:
                        for q in pred[j]:
                            stack.append((q, d, m, k))
                if worst:
                    add[i] = worst
            if not add:
                return total
            out = []
            for i, x in enumerate(ins):
                if i in add:
                    n = add[i]
                    total += n
                    while n > 0:
                        k = min(n, 16)
                        out.append(Ins(f's_nop {k - 1} ; hz'))
                        n -= k
                out.append(x)
            self.ins = out

    def check_waits(self, entries=None, maxstates=400000):
        succ, pred = self._cfg()
        ins = self.ins
        labels = {x.mn: i for i, x in enumerate(ins) if x.kind == 'label'}
        starts = [labels[e] for e in entries] if entries else [0]
        errs = {}
        seen = set()
        stack = [(s, (), ()) for s in starts]
        n = 0
        while stack:
            i, vm, lg = stack.pop()
            while True:
                x = ins[i]
                if x.kind == 'label' or len(pred[i]) > 1:
                    key = (i, vm, lg)
                    if key in seen:
                        break
                    seen.add(key)
                    n += 1
                    if n > maxstates:
                        raise RuntimeError('check_waits: too many states')
                if x.kind == 'ins':
                    if x.mn == 's_waitcnt':
                        m = re.search(r'vmcnt\((\d+)\)', x.text)
                        if m:
                            k = int(m.group(1))
                            vm = vm[len(vm) - k:] if k < len(vm) else vm
                            if k == 0:
                                vm = ()
                        m = re.search(r'lgkmcnt\((\d+)\)', x.text)
                        if m:
                            k = int(m.group(1))
                            if k == 0:
                                lg = ()
                            elif not any(e[0] == 'smem' for e in lg):
                                lg = lg[len(lg) - k:] if k < len(lg) else lg
                    else:
                        touched = x.uses | x.defs
                        if touched:
                            for e in vm:
                                if e & touched:
                                    if x.cls == 'vmem' and not (e & x.uses):
                                        continue
                                    errs.setdefault(i, f'vm-pending {sorted(e & touched)[:4]}')
                            for e in lg:
                                if e[1] & touched:
                                    if x.cls == 'ds' and e[0] == 'ds' and not (e[1] & x.uses):
                                        continue
                                    errs.setdefault(i, f'lgkm-pending {sorted(e[1] & touched)[:4]}')
                        if x.vm:
                            vm = (vm + (frozenset(x.defs),))[-63:]
                        if x.lgkm:
                            lg = (lg + ((x.cls, frozenset(x.defs)),))[-24:]
                s = succ[i]
                if not s:
                    break
                for j in s[1:]:
                    stack.append((j, vm, lg))
                i = s[0]
        return [(i, ins[i].text, e) for i, e in sorted(errs.items())]

    def text(self):
        out = []
        for x in self.ins:
            if x.kind == 'label':
                out.append(x.text)
            elif x.kind == 'blank':
                continue
            else:
                out.append(' ' + x.text.split(';')[0].rstrip())
        return '\n'.join(out) + '\n'

    def count(self):
        return sum(1 for x in self.ins if x.kind == 'ins')
```

```python
import struct
from common import *
import layout as L
from rec import mf32, mf16, cvt2, TIMEOUT


def gen_at(p, C, verify, DELTA, only0=False):
    S = C.S
    V = Alloc('v', 1, 256)
    ws, sW, sH = C.srd_ws, C.sW, C.sRole
    verify()
    t = [S.get(1) for _ in range(5)]
    sTo, sL, sS, sS1, sT1, sFlag, sCexp = (S.get(1) for _ in range(7))
    bQ, bK, bV, bO, bM = (S.get(1) for _ in range(5))
    vLane, vL16, vL8, vF, vFa, vFb, x, y = (V.get(1) for _ in range(8))
    bd, bm, one16 = V.get(4, 2), V.get(4, 2), V.get(4, 2)
    cbits = struct.unpack('<I', struct.pack('<f', (192 ** -0.5) * 1.4426950408889634))[0]
    p(f'''
    v_and_b32 {vLane}, 63, v0
    v_lshlrev_b32 {vL16}, 4, {vLane}
    v_lshlrev_b32 {vL8}, 3, {vLane}
    s_mov_b32 {sCexp}, {cbits:#x}
    s_lshr_b32 {sL}, {sW}, 1
    s_and_b32 {t[0]}, {sW}, 1
    s_mul_i32 {t[1]}, {sH}, 12288
    s_lshl_b32 {t[2]}, {t[0]}, 10
    s_add_u32 {t[2]}, {t[2]}, {t[1]}
    s_add_u32 {bQ}, {t[2]}, {L.QF}
    s_add_u32 {bO}, {t[2]}, {L.OF}
    s_mul_i32 {t[3]}, {sL}, {L.KF[1] - L.KF[0]}
    s_add_u32 {t[3]}, {t[3]}, {t[1]}
    s_add_u32 {bK}, {t[3]}, {L.KF[0]}
    s_add_u32 {bV}, {t[3]}, {L.VF[0]}
    s_mul_i32 {bM}, {sH}, 6144
    s_mul_i32 {t[3]}, {sL}, {DELTA * L.KM_STEP}
    s_add_u32 {bM}, {bM}, {t[3]}
    s_add_u32 {bM}, {bM}, {L.KM}
    s_lshl_b32 {sFlag}, {sL}, 6
    s_lshl_b32 {t[3]}, {sH}, 1
    s_add_u32 {sFlag}, {sFlag}, {t[3]}
    s_add_u32 {sFlag}, {sFlag}, {t[0]}
    s_lshl_b32 {sFlag}, {sFlag}, 2
    s_add_u32 {sFlag}, {sFlag}, {L.F_AT}
    ; flags of the q/k/v producers: matrix (lane>>2)%3, wave 3h + min(lane&3, 2)
    v_and_b32 {vFa}, 3, {vLane}
    v_min_u32 {vFa}, 2, {vFa}
    v_bfe_u32 {x}, {vLane}, 2, 2
    v_min_u32 {x}, 2, {x}
    v_mul_u32_u24 {x}, 96, {x}
    v_add_u32 {vFa}, {vFa}, {x}
    s_mul_i32 {t[3]}, {sH}, 3
    s_lshl_b32 {t[4]}, {sL}, 9
    s_add_u32 {t[3]}, {t[3]}, {t[4]}
    v_add_u32 {vFa}, {t[3]}, {vFa}
    v_lshlrev_b32 {vFa}, 2, {vFa}
    v_add_u32 {vFa}, {L.F_QKV}, {vFa}
    v_and_b32 {vFb}, 1, {vLane}
    s_lshl_b32 {t[3]}, {sH}, 1
    v_add_u32 {vFb}, {t[3]}, {vFb}
    v_lshlrev_b32 {vFb}, 2, {vFb}
    v_add_u32 {vFb}, {L.F_REC}, {vFb}
    v_mov_b32 {y}, 0xf149f2ca
    v_lshrrev_b32 {x}, 5, {vLane}
    v_cmp_eq_u32 vcc, {sL}, {x}
    v_cndmask_b32 {bm[0]}, {y}, 0, vcc
    ''')
    assert L.VF[1] - L.VF[0] == L.KF[1] - L.KF[0]
    for r in range(4):
        if r:
            p(f'v_mov_b32 {bm[r]}, {bm[0]}')
        p(f'''
        v_mov_b32 {one16[r]}, 0x3f803f80
        v_lshrrev_b32 {x}, 4, {vLane}
        v_lshlrev_b32 {x}, 2, {x}
        v_add_u32 {x}, {r}, {x}
        v_and_b32 {vF}, 15, {vLane}
        v_cmp_le_u32 vcc, {x}, {vF}
        v_cndmask_b32 {bd[r]}, {y}, 0, vcc
        ''')
    V.free(x, y, vLane)
    Q, K, Vv, KMr, VMr = V.get(24, 2), V.get(48, 2), V.get(48, 2), V.get(24, 2), V.get(24, 2)
    sc = V.get(12, 2)
    P, Pm, ls = V.get(4, 2), V.get(2, 2), V.get(4, 2)
    mx, m2 = V.get(1), V.get(1)
    p(f'v_mov_b32 {P[2]}, 0\nv_mov_b32 {P[3]}, 0\ns_mov_b32 {sS}, 0')

    def wait(va, thr):
        lab = p.uid('Lw')
        p(f's_mov_b32 {sTo}, 0')
        p.label(lab)
        p(f'''
        s_add_u32 {sTo}, {sTo}, 1
        s_cmp_gt_u32 {sTo}, {TIMEOUT}
        s_cbranch_scc1 {C.fail}
        buffer_load_dword {vF}, {va}, {ws}, 0 offen sc1
        s_waitcnt vmcnt(0)
        v_cmp_le_u32 vcc, {thr}, {vF}
        s_cmp_eq_u64 vcc, -1
        s_cbranch_scc0 {lab}
        ''')

    def loads(dst, n, base, step, va=None, width=4):
        for i in range(n):
            o = i * step
            if o % 4096 < step:
                p(f's_add_u32 {t[4]}, {base}, {o - o % 4096}')
            p(f'buffer_load_dwordx{width} {dst.sub(width * i, width)}, {va or vL16}, {ws}, {t[4]} offen offset:{o % 4096} sc1')

    if only0:
        p(f's_cmp_eq_u32 {sL}, 1\ns_cbranch_scc1 L_exit')
    p(f's_bitcmp1_b32 {sW}, 0\ns_cbranch_scc1 L_at_1')
    for tau in range(2):
        if tau:
            p.label('L_at_1')
        top = p.uid('Lat')
        p.label(top)
        p(f's_add_u32 {sS1}, {sS}, 1\ns_mul_i32 {sT1}, {sL}, {DELTA}\ns_add_u32 {sT1}, {sT1}, {sS1}')
        wait(vFa, sS1)
        p(f's_mul_i32 {t[0]}, {sS}, {L.SEG_F}\ns_add_u32 {t[1]}, {t[0]}, {bQ}\ns_add_u32 {t[2]}, {t[0]}, {bK}\ns_add_u32 {t[3]}, {t[0]}, {bV}')
        loads(Q, 6, t[1], 2048)
        if tau:
            loads(K, 12, t[2], 1024)
        else:
            loads(K, 6, t[2], 2048)
        loads(Vv, 12, t[3], 1024)
        p('s_waitcnt vmcnt(12)')
        for i in range(6):
            if tau:
                p(mf32(sc.sub(0, 4), K.sub(8 * i, 4), Q.sub(4 * i, 4), 0 if i == 0 else sc.sub(0, 4)))
                p(mf32(sc.sub(4, 4), K.sub(8 * i + 4, 4), Q.sub(4 * i, 4), bd if i == 0 else sc.sub(4, 4)))
            else:
                p(mf32(sc.sub(0, 4), K.sub(4 * i, 4), Q.sub(4 * i, 4), bd if i == 0 else sc.sub(0, 4)))
        wait(vFb, sT1)
        p(f's_mul_i32 {t[1]}, {sS}, {L.KM_STEP}\ns_add_u32 {t[1]}, {t[1]}, {bM}\ns_add_u32 {t[2]}, {t[1]}, {L.VM - L.KM}')
        loads(KMr, 6, t[1], 1024)
        loads(VMr, 12, t[2], 512, vL8, 2)
        for i in range(6):
            p(f's_waitcnt vmcnt({17 - i})')
            p(mf32(sc.sub(8, 4), KMr.sub(4 * i, 4), Q.sub(4 * i, 4), bm if i == 0 else sc.sub(8, 4)))
        idx = list(range(12)) if tau else [0, 1, 2, 3, 8, 9, 10, 11]
        p(f'v_max3_f32 {mx}, {sc[0]}, {sc[1]}, {sc[2]}')
        if tau:
            p(f'v_max3_f32 {mx}, {mx}, {sc[4]}, {sc[5]}\nv_max3_f32 {mx}, {mx}, {sc[6]}, {sc[7]}')
        p(f'''
        v_max3_f32 {m2}, {sc[3]}, {sc[8]}, {sc[9]}
        v_max3_f32 {mx}, {mx}, {sc[10]}, {sc[11]}
        v_max_f32 {mx}, {mx}, {m2}
        v_mov_b32 {m2}, {mx}
        v_permlane32_swap_b32 {mx}, {m2}
        v_max_f32 {mx}, {mx}, {m2}
        v_mov_b32 {m2}, {mx}
        v_permlane16_swap_b32 {mx}, {m2}
        v_max_f32 {mx}, {mx}, {m2}
        v_mul_f32 {mx}, {sCexp}, {mx}
        ''')
        for r in idx:
            p(f'v_fma_f32 {sc[r]}, {sc[r]}, {sCexp}, -{mx}')
        for r in idx:
            p(f'v_exp_f32 {sc[r]}, {sc[r]}')
        p(cvt2(P.sub(0, 2), sc.sub(0, 4)))
        if tau:
            p(cvt2(P.sub(2, 2), sc.sub(4, 4)))
        p(cvt2(Pm, sc.sub(8, 4)))
        oa = K
        p(mf32(ls, one16, P, 0))
        for e in range(12):
            p(mf32(oa.sub(4 * e, 4), Vv.sub(4 * e, 4), P, 0))
            if e == 1:
                p(mf16(ls, one16.sub(0, 2), Pm, ls))
            if e == 5:
                p(f'v_rcp_f32 {m2}, {ls[0]}\ns_add_u32 {t[1]}, {t[0]}, {bO}\ns_waitcnt vmcnt(0)')
        for e in range(12):
            p(mf16(oa.sub(4 * e, 4), VMr.sub(2 * e, 2), Pm, oa.sub(4 * e, 4)))
            if e >= 5 and e % 2 == 1:
                pi = (e - 5) // 2
                fin(p, oa, Q, pi, m2, vL16, ws, t)
        for pi in range(4, 6):
            fin(p, oa, Q, pi, m2, vL16, ws, t)
        p(f'''
        s_waitcnt vmcnt(0)
        s_mov_b64 exec, 1
        v_mov_b32 {vF}, {sS1}
        buffer_store_dword {vF}, off, {ws}, {sFlag} sc1
        s_mov_b64 exec, -1
        s_mov_b32 {sS}, {sS1}
        s_cmp_lt_u32 {sS}, {L.NSEG}
        s_cbranch_scc1 {top}
        s_endpgm
        ''')


def fin(p, oa, Q, pi, rinv, vL16, ws, t):
    a = oa.sub(8 * pi, 8)
    d = Q.sub(4 * pi, 4)
    for r in range(8):
        p(f'v_mul_f32 {a[r]}, {a[r]}, {rinv}')
    p(cvt2(d.sub(0, 2), a.sub(0, 4)))
    p(cvt2(d.sub(2, 2), a.sub(4, 4)))
    if pi % 2 == 0:
        p(f's_add_u32 {t[4]}, {t[1]}, {pi * 2048}')
    p(f'buffer_store_dwordx4 {d}, {vL16}, {ws}, {t[4]} offen offset:{(pi % 2) * 2048} sc1')
```

```python
import sys, json
from common import *
import main, rec, gemm, at, rr
import layout as L

HEADER = open('/code/' + NAME + '.s.ref').read() if False else ''

def build(path, DELTA=8, LEAD=12, prof=False, remote=False, opt=None, quiet=False):
    roles = [('rec', 64, lambda p, C, v: rec.gen_rec(p, C, DELTA, v, prof=prof, opt=opt)),
             ('qkv', 72, lambda p, C, v: gemm.gen_qkv(p, C, v, LEAD)),
             ('o', 40, lambda p, C, v: gemm.gen_od(p, C, v, 'o')),
             ('at', 32, lambda p, C, v: at.gen_at(p, C, v, DELTA)),
             ('gu', 24, lambda p, C, v: gemm.gen_gu(p, C, v)),
             ('d', 10, lambda p, C, v: gemm.gen_od(p, C, v, 'd')),
             ('r1', 8, lambda p, C, v: rr.gen_r(p, C, v, 1)),
             ('r2', 4, lambda p, C, v: rr.gen_r(p, C, v, 2))]
    p, ns = main.gen_main(DELTA, roles, prof=prof, force_remote=remote)
    n = p.fix_hazards()
    errs = p.check_waits()
    q, nv = rr.gen_prologue()
    q.fix_hazards()
    errs += q.check_waits()
    if not quiet: print(path, 'nops', n, 'ins', p.count(), 'sgpr', ns)
    for e in errs[:8]: print('WAIT', e)
    txt = file_text([('pro_kernel', 256, 256, 0), ('main_kernel', 256, 256, 163840)],
                    [kernel_text('pro_kernel', q, (nv + 7) // 8 * 8, 32, (nv + 7) // 8 * 8), kernel_text('main_kernel', p, 512, 102, 256)])
    open(path, 'w').write(txt)

DEF = dict(odelay=2, ydelay=6, zdelay=2, wring=9)
if __name__ == '__main__':
    cfgs = json.load(open(sys.argv[1]))
    for k, v in cfgs.items():
        v = dict(v)
        pf = v.pop('prof', False)
        v.pop('check', None)
        o = dict(DEF); o.update(v.pop('opt', {}))
        build(f'out/{k}.s', prof=(True if pf is True else (set(pf) if pf else False)), opt=o, **v)
```

```python
from asmlib import *
NAME = 'interleave_layers__memory_aug_recurrent_mem_tr__glu_gated_glu__prompt'

def kernel_text(label, prog, nv, ns, acc):
    body = f'.globl {label}\n.p2align 8\n.type {label},@function\n{label}:\n' + prog.text()
    desc = (f'.amdhsa_kernel {label}\n  .amdhsa_next_free_vgpr {nv}\n  .amdhsa_next_free_sgpr {ns}\n'
            f'  .amdhsa_accum_offset {acc}\n  .amdhsa_group_segment_fixed_size 0\n  .amdhsa_kernarg_size 112\n'
            '  .amdhsa_user_sgpr_count 2\n  .amdhsa_user_sgpr_kernarg_segment_ptr 1\n'
            '  .amdhsa_system_sgpr_workgroup_id_x 1\n  .amdhsa_float_denorm_mode_32 3\n.end_amdhsa_kernel\n')
    return body, desc

def file_text(launches, kernels, header=''):
    s = header
    for (l, g, b, lds) in launches:
        s += f'; @launch kernel={l} grid=({g},1,1) block=({b},1,1) lds={lds}\n'
    s += '.amdgcn_target "amdgcn-amd-amdhsa--gfx950"\n.text\n'
    for body, _ in kernels:
        s += body
    s += '.section .rodata,"a"\n'
    for _, desc in kernels:
        s += '.p2align 6\n' + desc
    return s
```

```python
import struct
from common import *
import layout as L
from rec import mf32, cvt2, TIMEOUT, Prof

STG = 20480


class G:
    def __init__(self, p, C, nk, nt):
        self.p, self.C, self.nk, self.nt = p, C, nk, nt
        self.S = C.S
        self.V = Alloc('v', 1, 256)
        self.A = Alloc('a', 0, 256)
        self.t = [self.S.get(1) for _ in range(5)]
        self.sTo = self.S.get(1)
        self.W = [[self.wfrag() for k in range(nk)] for i in range(nt)]
        self.vLane, self.vL16 = self.V.get(1), self.V.get(1)
        p(f'v_and_b32 {self.vLane}, 63, v0\nv_lshlrev_b32 {self.vL16}, 4, {self.vLane}')

    def wfrag(self):
        try:
            return self.A.get(4, 4)
        except RuntimeError:
            return self.V.get(4, 4)

    def timeout(self):
        self.p(f's_add_u32 {self.sTo}, {self.sTo}, 1\ns_cmp_gt_u32 {self.sTo}, {TIMEOUT}\ns_cbranch_scc1 {self.C.fail}')

    def load_weights(self, srcs, pitch, kc, rowmap):
        p, V, t, sW = self.p, self.V, self.t, self.C.sW
        rows = 32 * kc
        vo, vtr = [], []
        x = V.get(1)
        base = 0
        plan = []
        for (srd, so, rb, tiles) in srcs:
            cpr = rb // 16
            sh = cpr.bit_length() - 1
            a, b = V.get(1), V.get(1)
            p(f'''
            v_lshrrev_b32 {a}, {sh}, {self.vLane}
            v_mul_u32_u24 {a}, {pitch}, {a}
            v_and_b32 {x}, {cpr - 1}, {self.vLane}
            v_lshl_add_u32 {a}, {x}, 4, {a}
            v_lshrrev_b32 {b}, 4, {self.vLane}
            v_lshlrev_b32 {b}, {3 if rowmap == 'nat' else 2}, {b}
            v_bfe_u32 {x}, {self.vLane}, 2, 2
            v_add_u32 {b}, {b}, {x}
            v_mul_u32_u24 {b}, {rb}, {b}
            v_and_b32 {x}, 3, {self.vLane}
            v_lshl_add_u32 {b}, {x}, 3, {b}
            s_mul_i32 {t[0]}, {sW}, {2 * STG}
            s_add_u32 {t[0]}, {t[0]}, {base}
            v_add_u32 {b}, {t[0]}, {b}
            ''')
            plan.append((srd, so, rb, tiles, a, b, base, 64 // cpr))
            base += rows * rb
        assert base <= STG
        V.free(x)
        nch = -(-self.nk // kc)

        def ninstr(c):
            r = 32 * min(kc, self.nk - c * kc)
            return sum(r // q[7] for q in plan)

        def issue(c):
            r = 32 * min(kc, self.nk - c * kc)
            p(f's_mul_i32 {t[0]}, {sW}, {2 * STG}')
            for (srd, so, rb, tiles, a, b, base, rpi) in plan:
                for i in range(r // rpi):
                    p(f's_add_u32 m0, {t[0]}, {(c & 1) * STG + base + i * 1024}')
                    p(f's_add_u32 {t[1]}, {so}, {(c * rows + i * rpi) * pitch}')
                    p(f'buffer_load_dwordx4 {a}, {srd}, {t[1]} offen lds')

        issue(0)
        for c in range(nch):
            if c + 1 < nch:
                issue(c + 1)
                p(f's_waitcnt vmcnt({ninstr(c + 1)})')
            else:
                p('s_waitcnt vmcnt(0)')
            for kl in range(min(kc, self.nk - c * kc)):
                for (srd, so, rb, tiles, a, b, base, rpi) in plan:
                    for j, ti in enumerate(tiles):
                        for hf in range(2):
                            row = 32 * kl + (4 if rowmap == 'nat' else 16) * hf
                            p(f'ds_read_b64_tr_b16 {self.W[ti][c * kc + kl].sub(2 * hf, 2)}, {b} offset:{(c & 1) * STG + row * rb + 32 * j}')
            p('s_waitcnt lgkmcnt(0)')
        for q in plan:
            V.free(q[4], q[5])
        p('s_barrier')

    def wait_flags(self, vF, vFa, thr, have=False, ok=None):
        p = self.p
        lab = p.uid('Lw')
        p(f's_mov_b32 {self.sTo}, 0')
        p.label(lab)
        self.timeout()
        p(f'''
        buffer_load_dword {vF}, {vFa}, {self.C.srd_ws}, 0 offen sc1
        s_waitcnt vmcnt(0)
        v_cmp_le_u32 vcc, {thr}, {vF}
        s_cmp_eq_u64 vcc, -1
        s_cbranch_scc0 {lab}
        ''')

    def rows_setup(self):
        p, V, t, sW = self.p, self.V, self.t, self.C.sW
        self.vD = V.get(1)
        self.vR = [V.get(1), V.get(1)]
        x, y = V.get(1), V.get(1)
        p(f'''
        v_lshrrev_b32 {x}, 3, {self.vLane}
        s_lshl_b32 {t[0]}, {sW}, 3
        v_add_u32 {x}, {t[0]}, {x}
        v_bfe_u32 {y}, {x}, 1, 3
        v_mul_u32_u24 {x}, 1280, {x}
        v_and_b32 {self.vD}, 7, {self.vLane}
        v_xor_b32 {self.vD}, {self.vD}, {y}
        v_lshl_add_u32 {self.vD}, {self.vD}, 4, {x}
        v_and_b32 {x}, 15, {self.vLane}
        v_bfe_u32 {y}, {self.vLane}, 1, 3
        v_lshrrev_b32 {self.vR[0]}, 4, {self.vLane}
        v_add_u32 {self.vR[1]}, 4, {self.vR[0]}
        v_xor_b32 {self.vR[0]}, {self.vR[0]}, {y}
        v_xor_b32 {self.vR[1]}, {self.vR[1]}, {y}
        v_lshlrev_b32 {x}, 7, {x}
        v_lshl_add_u32 {self.vR[0]}, {self.vR[0]}, 4, {x}
        v_lshl_add_u32 {self.vR[1]}, {self.vR[1]}, 4, {x}
        ''')
        V.free(x, y)

    def rows_dma(self, kb, sM, sA):
        return f's_add_u32 m0, {sM}, {kb * (4096 - 128)}\nbuffer_load_dwordx4 {self.vD}, {self.C.srd_ws}, {sA} offen offset:{kb * 128} sc1 lds'

    def rows_read(self, dst, k, tau, vR=None):
        vR = vR or self.vR
        return f'ds_read_b128 {dst}, {vR[k & 1]} offset:{(k >> 1) * 4096 + tau * 2048}'

    def stream(self, acc, ring, read, swap, cs, wait_chunk, hooks):
        p, nk, nt = self.p, self.nk, self.nt
        PD = 2
        R = PD + 1

        def rd(k):
            if k % cs == 0:
                wait_chunk(k // cs)
            for tau in range(2):
                p(read(ring.sub(8 * (k % R) + 4 * tau, 4), k, tau))
        for k in range(PD):
            rd(k)
        for k in range(nk):
            if k + PD < nk:
                rd(k + PD)
            for tau in range(2):
                if tau == 0 or k == 0 or k + PD >= nk:
                    p(f's_waitcnt lgkmcnt({2 * min(PD, nk - 1 - k) + (1 - tau if (k == 0 or k + PD >= nk) else 0)})')
                b = ring.sub(8 * (k % R) + 4 * tau, 4)
                for i in range(nt):
                    a = acc[i][tau]
                    p(mf32(a, b, self.W[i][k], 0 if k == 0 else a) if swap else mf32(a, self.W[i][k], b, 0 if k == 0 else a))
            if k in hooks:
                hooks[k]()


def srd_from(p, srd, ptr, nbytes):
    p(f's_mov_b32 {srd[0]}, {ptr[0]}\ns_mov_b32 {srd[1]}, {ptr[1]}\ns_mov_b32 {srd[2]}, {nbytes}\ns_mov_b32 {srd[3]}, 0x20000')


def gen_qkv(p, C, verify, LEAD, only=None):
    g = G(p, C, 20, 4)
    S, V, t, ws, sW, sC = g.S, g.V, g.t, C.srd_ws, C.sW, C.sRole
    srd, ptr = S.get(4), S.get(8, 4)
    sM, sCol = S.get(1), S.get(1)
    p(f'''
    s_load_dwordx4 {ptr[0:4]}, {C.karg}, 16
    s_load_dwordx2 {ptr[4:6]}, {C.karg}, 32
    s_cmp_ge_u32 {sC}, 24
    s_cselect_b32 {sM}, 1, 0
    s_cmp_ge_u32 {sC}, 48
    s_cselect_b32 {sM}, 2, {sM}
    s_mul_i32 {t[0]}, {sM}, 24
    s_sub_u32 {sCol}, {sC}, {t[0]}
    s_lshl_b32 {sCol}, {sCol}, 2
    s_add_u32 {sCol}, {sCol}, {sW}
    s_waitcnt lgkmcnt(0)
    s_cmp_eq_u32 {sM}, 1
    s_cselect_b32 {ptr[0]}, {ptr[2]}, {ptr[0]}
    s_cselect_b32 {ptr[1]}, {ptr[3]}, {ptr[1]}
    s_cmp_eq_u32 {sM}, 2
    s_cselect_b32 {ptr[0]}, {ptr[4]}, {ptr[0]}
    s_cselect_b32 {ptr[1]}, {ptr[5]}, {ptr[1]}
    s_lshl_b32 {t[4]}, {sCol}, 7
    ''')
    srd_from(p, srd, ptr, 640 * 12288)
    g.load_weights([(srd, t[4], 128, [0, 1, 2, 3])], 12288, 5, 'nat')
    verify()
    g.rows_setup()
    vR1 = [V.get(1), V.get(1)]
    vF, vFa, vX = V.get(1), V.get(1), V.get(1)
    acc_ = V.get(32, 2)
    acc = [[acc_.sub(8 * i + 4 * tau, 4) for tau in range(2)] for i in range(4)]
    ring = V.get(24, 2)
    ob = V.get(16, 2)
    sI, sL, sS, sLn, sSn, sPre, sBuf, sOut0, sOut1, sFl, sA, sMb, sPubA, sPubV = (S.get(1) for _ in range(14))
    NI = 128
    p(f'''
    v_and_b32 {vFa}, 15, {g.vLane}
    v_lshlrev_b32 {vFa}, 2, {vFa}
    v_add_u32 {vFa}, {L.F_R2}, {vFa}
    s_lshl_b32 {t[0]}, {sCol}, 12
    s_mov_b32 {t[1]}, {L.QF}
    s_cmp_eq_u32 {sM}, 1
    s_cselect_b32 {sOut0}, {L.KF[0]}, {t[1]}
    s_cselect_b32 {sOut1}, {L.KF[1]}, {t[1]}
    s_cmp_eq_u32 {sM}, 2
    s_cselect_b32 {sOut0}, {L.VF[0]}, {sOut0}
    s_cselect_b32 {sOut1}, {L.VF[1]}, {sOut1}
    s_add_u32 {sOut0}, {sOut0}, {t[0]}
    s_add_u32 {sOut1}, {sOut1}, {t[0]}
    s_lshl_b32 {sFl}, {sC}, 2
    s_add_u32 {sFl}, {sFl}, {sW}
    s_lshl_b32 {sFl}, {sFl}, 2
    s_add_u32 {sFl}, {sFl}, {L.F_QKV}
    s_mov_b32 {sI}, 0
    s_mov_b32 {sPre}, 0
    s_mov_b32 {sBuf}, 0
    s_mov_b32 {sLn}, 0
    s_mov_b32 {sSn}, 0
    s_mov_b32 {sPubV}, 0
    s_mov_b32 {sPubA}, {L.F_QKV + 4092}
    ''')

    def item_of(sIdx, dl, ds):
        p(f'''
        s_sub_u32 {t[0]}, {sIdx}, {LEAD}
        s_lshr_b32 {t[1]}, {t[0]}, 1
        s_add_u32 {t[2]}, {t[1]}, {LEAD}
        s_bitcmp1_b32 {t[0]}, 0
        s_cselect_b32 {ds}, {t[2]}, {t[1]}
        s_cselect_b32 {dl}, 0, 1
        s_cmp_lt_u32 {sIdx}, {LEAD}
        s_cselect_b32 {ds}, {sIdx}, {ds}
        s_cselect_b32 {dl}, 0, {dl}
        s_sub_u32 {t[0]}, {sIdx}, 64
        s_cmp_ge_u32 {sIdx}, {128 - LEAD}
        s_cselect_b32 {ds}, {t[0]}, {ds}
        s_cselect_b32 {dl}, 1, {dl}
        ''')

    def dma_setup(l_, s_, buf):
        p(f'''
        s_mul_i32 {sA}, {s_}, {L.SEG_X}
        s_cmp_eq_u32 {l_}, 0
        s_cselect_b32 {t[0]}, 0, {L.XN[1] - L.XN[0]}
        s_add_u32 {sA}, {sA}, {t[0]}
        s_add_u32 {sA}, {sA}, {L.XN[0]}
        s_lshl_b32 {sMb}, {sW}, 10
        s_add_u32 {sMb}, {sMb}, {buf}
        ''')

    def publish():
        p(f's_mov_b64 exec, 1\nv_mov_b32 {vX}, {sPubV}\nbuffer_store_dword {vX}, off, {ws}, {sPubA} sc1\ns_mov_b64 exec, -1')

    p(f's_cmp_eq_u32 {sM}, 2\ns_cbranch_scc1 L_qkv_v')
    for swap in (False, True):
        if swap:
            p.label('L_qkv_v')
        top, havea, nopub, nopre, done = (p.uid(x) for x in ('Lqt', 'Lqa', 'Lqn', 'Lqp', 'Lqd'))
        p.label(top)
        p(f's_mov_b32 {sL}, {sLn}\ns_mov_b32 {sS}, {sSn}\ns_cmp_eq_u32 {sPre}, 1\ns_cbranch_scc1 {havea}')
        p('s_waitcnt vmcnt(0)')
        publish()
        skip = p.uid('Lqs')
        p(f's_cmp_eq_u32 {sL}, 0\ns_cbranch_scc1 {skip}\ns_add_u32 {t[3]}, {sS}, 1')
        g.wait_flags(vF, vFa, t[3])
        p.label(skip)
        dma_setup(sL, sS, sBuf)
        for kb in range(10):
            p(g.rows_dma(kb, sMb, sA))
        p.label(havea)
        p(f'buffer_load_dword {vF}, {vFa}, {ws}, 0 offen sc1')
        p(f'v_add_u32 {vR1[0]}, {sBuf}, {g.vR[0]}\nv_add_u32 {vR1[1]}, {sBuf}, {g.vR[1]}')
        p(f's_add_u32 {sI}, {sI}, 1')
        item_of(sI, sLn, sSn)

        def wait_chunk(c):
            p(f's_waitcnt vmcnt({9 - 2 * c})\ns_barrier')

        def hook_pub():
            p(f's_cmp_eq_u32 {sPre}, 1\ns_cbranch_scc0 {nopub}\ns_waitcnt vmcnt(1)')
            publish()
            p.label(nopub)

        def hook_pre():
            ok = p.uid('Lqo')
            p(f'''
            s_mov_b32 {sPre}, 0
            s_cmp_ge_u32 {sI}, {NI}
            s_cbranch_scc1 {nopre}
            s_cmp_eq_u32 {sLn}, 0
            s_cbranch_scc1 {ok}
            s_waitcnt vmcnt(0)
            v_cmp_lt_u32 vcc, {sSn}, {vF}
            s_cmp_eq_u64 vcc, -1
            s_cbranch_scc0 {nopre}
            {ok}:
            s_mov_b32 {sPre}, 1
            s_xor_b32 {t[3]}, {sBuf}, 40960
            ''')
            dma_setup(sLn, sSn, t[3])
            for kb in range(10):
                p(g.rows_dma(kb, sMb, sA))
            p.label(nopre)

        g.stream(acc, ring, lambda d, k, tau: g.rows_read(d, k, tau, vR1), swap, 4, wait_chunk, {5: hook_pub, 15: hook_pre})
        p(f'''
        s_mul_i32 {t[0]}, {sS}, {L.SEG_F}
        s_cmp_eq_u32 {sL}, 0
        s_cselect_b32 {t[1]}, {sOut0}, {sOut1}
        s_add_u32 {t[0]}, {t[0]}, {t[1]}
        s_lshl_b32 {sPubA}, {sL}, 11
        s_add_u32 {sPubA}, {sPubA}, {sFl}
        s_add_u32 {sPubV}, {sS}, 1
        s_xor_b32 {sBuf}, {sBuf}, 40960
        ''')
        for q in range(4):
            d = ob.sub(4 * q, 4)
            if swap:
                a, b = acc[q][0], acc[q][1]
            else:
                a, b = acc[2 * (q >> 1)][q & 1], acc[2 * (q >> 1) + 1][q & 1]
            p(cvt2(d.sub(0, 2), a))
            p(cvt2(d.sub(2, 2), b))
            p(f'buffer_store_dwordx4 {d}, {g.vL16}, {ws}, {t[0]} offen offset:{1024 * q} sc1')
        p(f's_cmp_lt_u32 {sI}, {NI if only is None else only}\ns_cbranch_scc1 {top}')
        p('s_waitcnt vmcnt(0)')
        publish()
        p('s_endpgm')


def simple_loop(p, g, name, sLayer, vF, vFa, dma, stream, epilogue, sFlag):
    S, ws = g.S, g.C.srd_ws
    sS, sS1 = S.get(1), S.get(1)
    top = p.uid('L' + name)
    p(f's_mov_b32 {sS}, 0')
    p.label(top)
    p(f's_add_u32 {sS1}, {sS}, 1')
    g.wait_flags(vF, vFa, sS1)
    dma(sS)
    stream()
    epilogue(sS)
    skip = p.uid('Lnp')
    p(f'''
    s_waitcnt vmcnt(0)
    s_barrier
    s_cmp_eq_u32 {g.C.sW}, 0
    s_cbranch_scc0 {skip}
    s_mov_b64 exec, 1
    v_mov_b32 {vF}, {sS1}
    buffer_store_dword {vF}, off, {ws}, {sFlag} sc1
    s_mov_b64 exec, -1
    {skip}:
    s_mov_b32 {sS}, {sS1}
    s_cmp_lt_u32 {sS}, {L.NSEG}
    s_cbranch_scc1 {top}
    s_endpgm
    ''')


def gen_gu(p, C, verify):
    g = G(p, C, 20, 4)
    S, V, t, ws, sW, sC = g.S, g.V, g.t, C.srd_ws, C.sW, C.sRole
    srd, srd2, ptr = S.get(4), S.get(4), S.get(4, 4)
    sL, sCol, sFlag, sA, sMb = (S.get(1) for _ in range(5))
    p(f'''
    s_load_dwordx4 {ptr}, {C.karg}, 64
    s_cmp_ge_u32 {sC}, 12
    s_cselect_b32 {sL}, 1, 0
    s_mul_i32 {t[0]}, {sL}, 12
    s_sub_u32 {t[0]}, {sC}, {t[0]}
    s_lshl_b32 {sFlag}, {sL}, 6
    s_add_u32 {sFlag}, {sFlag}, {t[0]}
    s_lshl_b32 {sFlag}, {sFlag}, 2
    s_add_u32 {sFlag}, {sFlag}, {L.F_GU}
    s_lshl_b32 {sCol}, {t[0]}, 2
    s_add_u32 {sCol}, {sCol}, {sW}
    s_lshl_b32 {t[4]}, {sCol}, 6
    s_waitcnt lgkmcnt(0)
    ''')
    srd_from(p, srd, ptr[0:2], 640 * 3072)
    srd_from(p, srd2, ptr[2:4], 640 * 3072)
    g.load_weights([(srd, t[4], 64, [0, 1]), (srd2, t[4], 64, [2, 3])], 3072, 5, 'nat')
    verify()
    g.rows_setup()
    vF, vFa = V.get(1), V.get(1)
    acc_ = V.get(32, 2)
    acc = [[acc_.sub(8 * i + 4 * tau, 4) for tau in range(2)] for i in range(4)]
    ring = V.get(24, 2)
    ob = V.get(8, 2)
    sNl = S.get(1)
    p(f'''
    v_and_b32 {vFa}, 31, {g.vLane}
    v_lshlrev_b32 {vFa}, 2, {vFa}
    s_lshl_b32 {t[0]}, {sL}, 8
    s_add_u32 {t[0]}, {t[0]}, {L.F_R1}
    v_add_u32 {vFa}, {t[0]}, {vFa}
    s_lshl_b32 {sMb}, {sW}, 10
    s_mov_b32 {sNl}, 0xbfb8aa3b
    ''')

    def dma(sS):
        p(f's_mul_i32 {sA}, {sS}, {L.SEG_X}\ns_add_u32 {sA}, {sA}, {L.XAN}')
        for kb in range(10):
            p(g.rows_dma(kb, sMb, sA))

    def stream():
        g.stream(acc, ring, g.rows_read, False, 4, lambda c: p(f's_waitcnt vmcnt({8 - 2 * c})\ns_barrier'), {})

    def epilogue(sS):
        p(f's_mul_i32 {t[0]}, {sS}, {L.SEG_H}\ns_lshl_b32 {t[1]}, {sCol}, 11\ns_add_u32 {t[0]}, {t[0]}, {t[1]}\ns_add_u32 {t[0]}, {t[0]}, {L.HF}')
        for tau in range(2):
            gs = [acc[i][tau][r] for i in range(2) for r in range(4)]
            us = [acc[2 + i][tau][r] for i in range(2) for r in range(4)]
            for x in gs:
                p(f'v_mul_f32 {x}, {sNl}, {x}')
            for x in gs:
                p(f'v_exp_f32 {x}, {x}')
            for x in gs:
                p(f'v_add_f32 {x}, 1.0, {x}')
            for x in gs:
                p(f'v_rcp_f32 {x}, {x}')
            for x, u in zip(gs, us):
                p(f'v_mul_f32 {x}, {x}, {u}')
            d = ob.sub(4 * tau, 4)
            p(cvt2(d.sub(0, 2), acc[0][tau]))
            p(cvt2(d.sub(2, 2), acc[1][tau]))
            p(f'buffer_store_dwordx4 {d}, {g.vL16}, {ws}, {t[0]} offen offset:{1024 * tau} sc1')

    simple_loop(p, g, 'gu', sL, vF, vFa, dma, stream, epilogue, sFlag)


def gen_od(p, C, verify, kind):
    g = G(p, C, 48, 2)
    S, V, t, ws, sW, sC = g.S, g.V, g.t, C.srd_ws, C.sW, C.sRole
    srd, ptr = S.get(4), S.get(2)
    sL, sKg, sNu, sFlag, sA, sMb, sOut = (S.get(1) for _ in range(7))
    n = 20 if kind == 'o' else 5
    p(f'''
    s_load_dwordx2 {ptr}, {C.karg}, {40 if kind == 'o' else 80}
    s_cmp_ge_u32 {sC}, {n}
    s_cselect_b32 {sL}, 1, 0
    s_mul_i32 {t[0]}, {sL}, {n}
    s_sub_u32 {t[0]}, {sC}, {t[0]}
    s_lshl_b32 {sFlag}, {sL}, 6
    s_add_u32 {sFlag}, {sFlag}, {t[0]}
    s_lshl_b32 {sFlag}, {sFlag}, 2
    s_add_u32 {sFlag}, {sFlag}, {L.F_O if kind == 'o' else L.F_D}
    s_mul_i32 {sKg}, {t[0]}, 0x3334
    s_lshr_b32 {sKg}, {sKg}, 16
    s_mul_i32 {t[1]}, {sKg}, 5
    s_sub_u32 {sNu}, {t[0]}, {t[1]}
    s_lshl_b32 {t[0]}, {sNu}, 8
    s_lshl_b32 {t[1]}, {sW}, 6
    s_add_u32 {t[0]}, {t[0]}, {t[1]}
    s_lshl_b32 {sOut}, {t[0]}, 1
    s_mul_i32 {t[4]}, {sKg}, {1536 * 1280}
    s_add_u32 {t[4]}, {t[4]}, {t[0]}
    s_mul_i32 {t[1]}, {sKg}, {L.SEG_X4}
    s_add_u32 {sOut}, {sOut}, {t[1]}
    s_add_u32 {sOut}, {sOut}, {L.PO if kind == 'o' else L.PD}
    s_waitcnt lgkmcnt(0)
    ''')
    srd_from(p, srd, ptr, (6144 if kind == 'o' else 1536) * 1280)
    g.load_weights([(srd, t[4], 64, [0, 1])], 1280, 10, 'pair')
    verify()
    vF, vFa, vO, vR2, x = (V.get(1) for _ in range(5))
    acc_ = V.get(16, 2)
    acc = [[acc_.sub(8 * i + 4 * tau, 4) for tau in range(2)] for i in range(2)]
    ring = V.get(24, 2)
    if kind == 'o':
        p(f'v_and_b32 {vFa}, 15, {g.vLane}\ns_lshl_b32 {t[0]}, {sKg}, 4\nv_add_u32 {vFa}, {t[0]}, {vFa}')
    else:
        p(f'v_and_b32 {vFa}, 15, {g.vLane}\nv_min_u32 {vFa}, 11, {vFa}')
    p(f'''
    v_lshlrev_b32 {vFa}, 2, {vFa}
    s_lshl_b32 {t[0]}, {sL}, 8
    s_add_u32 {t[0]}, {t[0]}, {L.F_AT if kind == 'o' else L.F_GU}
    v_add_u32 {vFa}, {t[0]}, {vFa}
    v_and_b32 {vO}, 15, {g.vLane}
    v_mul_u32_u24 {vO}, 2560, {vO}
    v_lshrrev_b32 {x}, 4, {g.vLane}
    v_lshl_add_u32 {vO}, {x}, 4, {vO}
    v_add_u32 {vR2}, 49152, {g.vL16}
    s_lshl_b32 {sMb}, {sW}, 10
    ''')
    V.free(x)

    def dma(sS):
        if kind == 'o':
            p(f's_mul_i32 {sA}, {sS}, {L.SEG_F}\ns_mul_i32 {t[0]}, {sKg}, 98304\ns_add_u32 {sA}, {sA}, {t[0]}\ns_add_u32 {sA}, {sA}, {L.OF}')
        else:
            p(f's_mul_i32 {sA}, {sS}, {L.SEG_H}\ns_add_u32 {sA}, {sA}, {L.HF}')
        p(f's_add_u32 {sA}, {sA}, {sMb}')
        for i in range(24):
            p(f's_add_u32 m0, {sMb}, {4096 * i}\ns_add_u32 {t[0]}, {sA}, {4096 * i}')
            p(f'buffer_load_dwordx4 {g.vL16}, {ws}, {t[0]} offen sc1 lds')

    def read(d, k, tau):
        return f'ds_read_b128 {d}, {vR2 if k >= 24 else g.vL16} offset:{(k % 24) * 2048 + tau * 1024}'

    def stream():
        g.stream(acc, ring, read, False, 8, lambda c: p(f's_waitcnt vmcnt({20 - 4 * c})\ns_barrier'), {})

    def epilogue(sS):
        p(f's_mul_i32 {t[0]}, {sS}, {L.SEG_PO if kind == "o" else L.SEG_X4}\ns_add_u32 {t[0]}, {t[0]}, {sOut}\ns_add_u32 {t[1]}, {t[0]}, {16 * 2560}')
        for tau in range(2):
            for i in range(2):
                p(f'buffer_store_dwordx4 {acc[i][tau]}, {vO}, {ws}, {t[tau]} offen offset:{64 * i} sc1')

    simple_loop(p, g, kind, sL, vF, vFa, dma, stream, epilogue, sFlag)
```

```python
NSEG = 64
_off = [0]
def _alloc(n, align=4096):
    o = (_off[0] + align - 1) // align * align
    _off[0] = o + n
    return o

FLAGS = _alloc(16384)
F_QKV = FLAGS + 0
F_REC = FLAGS + 4096
F_AT  = FLAGS + 5120
F_O   = FLAGS + 6144
F_R1  = FLAGS + 7168
F_GU  = FLAGS + 8192
F_D   = FLAGS + 9216
F_R2  = FLAGS + 10240
FLAGS_BYTES = 16384
XB_SLOT = 64 * 3072
XB = _alloc(2 * XB_SLOT)
ZB_SLOT = 20480
ZB = _alloc(2 * 4 * ZB_SLOT)
YB_SLOT = 2 * 80 * 1024
YB = _alloc(4 * YB_SLOT)
YL = _alloc(4 * YB_SLOT)
OB_SLOT = 64 * 3072
OB = _alloc(2 * OB_SLOT)
SENT_END = _off[0]
MAXSTEP = 80
KM_STEP = 32 * 6144
KM = _alloc(MAXSTEP * KM_STEP)
VM = _alloc(MAXSTEP * KM_STEP)
SEG_F = 32 * 12288
QF = _alloc(NSEG * SEG_F)
KF = [_alloc(NSEG * SEG_F), None]
VF = [_alloc(NSEG * SEG_F), None]
KF[1] = _alloc(NSEG * SEG_F)
VF[1] = _alloc(NSEG * SEG_F)
OF = _alloc(NSEG * SEG_F)
SEG_X = 32 * 1280
SEG_X4 = 32 * 2560
XN = [_alloc(NSEG * SEG_X), _alloc(NSEG * SEG_X)]
XAN = _alloc(NSEG * SEG_X)
XA = _alloc(NSEG * SEG_X4)
XR = [_alloc(NSEG * SEG_X4), _alloc(NSEG * SEG_X4)]
PD = _alloc(NSEG * SEG_X4)
SEG_PO = 4 * SEG_X4
PO = _alloc(NSEG * SEG_PO)
SEG_H = 48 * 2048
HF = _alloc(NSEG * SEG_H)
PROF = _alloc(1 << 20)
TRACE = _alloc(256 * 96 * 256)
END = _off[0]
assert END <= 268435456, END
```

```python
from common import *
import layout as L
import rec

class Ctx: pass

def gen_main(DELTA, roles, prof=False, force_remote=False, opt=None):
    p = Prog()
    C = Ctx()
    S = Alloc('s', 3, 102)
    C.S = S
    C.karg = Reg('s', 0, 2)
    C.srd_ws = S.get(4)
    dbg = S.get(4)
    C.sW, C.sRole, C.sMode = S.get(1), S.get(1), S.get(1)
    sX, sRank, sTick, sA, sB = (S.get(1) for _ in range(5))
    C.fail = 'L_fail'
    ws = C.srd_ws
    if prof:
        C.tstart = S.get(2)
        C.rstart = S.get(2)
        p(f's_memtime {C.tstart}\ns_memrealtime {C.rstart}')
    p(f'''
    s_cmp_ge_u32 s2, 256
    s_cbranch_scc1 L_exit
    s_load_dwordx2 {dbg[0:2]}, {C.karg}, 96
    s_load_dwordx2 {ws[0:2]}, {C.karg}, 104
    s_getreg_b32 {sX}, hwreg(HW_REG_XCC_ID, 0, 4)
    s_and_b32 {sX}, {sX}, 7
    v_lshrrev_b32 v1, 6, v0
    v_readfirstlane_b32 {C.sW}, v1
    s_waitcnt lgkmcnt(0)
    s_mov_b32 {dbg[2]}, 256
    s_mov_b32 {dbg[3]}, 0x20000
    s_mov_b32 {ws[2]}, 0x10000000
    s_mov_b32 {ws[3]}, 0x20000
    v_mov_b32 v3, 0
    s_cmp_eq_u32 {C.sW}, 0
    s_cbranch_scc0 L_noticket
    s_lshl_b32 {sA}, {sX}, 2
    v_mov_b32 v1, {sA}
    v_mov_b32 v2, 32
    v_cmp_eq_u32 vcc, 0, v0
    v_cndmask_b32 v1, v2, v1, vcc
    v_mov_b32 v2, 1
    s_mov_b64 exec, 3
    buffer_atomic_add v2, v1, {dbg}, 0 offen sc0
    v_lshlrev_b32 v1, 2, v0
    s_waitcnt vmcnt(0)
    ds_write_b32 v1, v2
    s_mov_b64 exec, -1
    s_waitcnt lgkmcnt(0)
    L_noticket:
    s_barrier
    ds_read_b64 v[4:5], v3
    s_waitcnt lgkmcnt(0)
    v_readfirstlane_b32 {sRank}, v4
    v_readfirstlane_b32 {sTick}, v5
    s_barrier
    s_lshl_b32 {C.sRole}, {sX}, 5
    s_add_u32 {C.sRole}, {C.sRole}, {sRank}
    s_mov_b32 {C.sMode}, 0
    ''')
    if force_remote:
        p('s_branch L_fallback')
    p(f'''
    s_cmp_lt_u32 {sRank}, 32
    s_cbranch_scc1 L_dispatch
    L_fallback:
    s_mov_b32 {C.sRole}, {sTick}
    s_mov_b32 {C.sMode}, 1
    s_waitcnt vmcnt(0) lgkmcnt(0)
    s_barrier
    L_dispatch:
    ''')

    def verify():
        lp, ok = p.uid('Lver'), p.uid('Lverok')
        p(f'''
        s_cmp_eq_u32 {C.sMode}, 1
        s_cbranch_scc1 {ok}
        s_mov_b32 {sB}, 0
        {lp}:
        s_add_u32 {sB}, {sB}, 1
        s_cmp_gt_u32 {sB}, {rec.TIMEOUT}
        s_cbranch_scc1 {C.fail}
        v_and_b32 v254, 7, v0
        v_lshlrev_b32 v254, 2, v254
        buffer_load_dword v255, v254, {dbg}, 0 offen sc1
        s_waitcnt vmcnt(0)
        v_cmp_eq_u32 vcc, 32, v255
        s_cmp_eq_u64 vcc, -1
        s_cbranch_scc1 {ok}
        s_mov_b32 {sA}, 0
        ''')
        for k in range(8):
            p(f'v_readlane_b32 {sX}, v255, {k}\ns_add_u32 {sA}, {sA}, {sX}')
        p(f's_cmp_eq_u32 {sA}, 256\ns_cbranch_scc1 L_fallback\ns_branch {lp}')
        p.label(ok)

    mark = list(S.used)
    lo = 0
    for (name, n, fn) in roles:
        p(f's_cmp_lt_u32 {C.sRole}, {lo + n}\ns_cbranch_scc1 L_role_{name}')
        lo += n
    p('s_branch L_exit')
    p(f'''
    L_fail:
    s_mov_b64 exec, 1
    v_mov_b32 v1, 0xdead
    buffer_store_dword v1, off, {dbg}, 0 offset:64 sc1
    L_exit:
    s_endpgm
    ''')
    lo = 0
    for (name, n, fn) in roles:
        S.used = list(mark)
        p.label(f'L_role_{name}')
        if lo:
            p(f's_sub_u32 {C.sRole}, {C.sRole}, {lo}')
        fn(p, C, verify)
        lo += n
    return p, S.high + 1
```

```python
import struct
from common import *
import layout as L

WO_LDS = 0
MEM_LDS = 122880
RX = 0
QKX = 20480
UX = QKX + 6144
VX = UX + 2048
VP = VX + 2048
LDS_END = MEM_LDS + VP + 3072
BUF = 61440
OOB = 0x7ff00000
TIMEOUT = 200000
TAU = [(0, 4), (1, 5), (2, 3)]


def mf32(d, a, b, c):
    return f'v_mfma_f32_16x16x32_bf16 {d}, {a}, {b}, {c}'


def mf16(d, a, b, c):
    return f'v_mfma_f32_16x16x16_bf16 {d}, {a}, {b}, {c}'


def cvt2(d, a):
    return f'v_cvt_pk_bf16_f32 {d[0]}, {a[0]}, {a[1]}\nv_cvt_pk_bf16_f32 {d[1]}, {a[2]}, {a[3]}'


def maxchain(p, acc, regs):
    regs = [regs[i] for i in range(len(regs))]
    p(f'v_max3_u32 {acc}, {regs[0]}, {regs[1]}, {regs[2]}')
    regs = regs[3:]
    while len(regs) >= 2:
        p(f'v_max3_u32 {acc}, {acc}, {regs[0]}, {regs[1]}')
        regs = regs[2:]
    if regs:
        p(f'v_max_u32 {acc}, {acc}, {regs[0]}')


class Filler:
    def __init__(self, p, items):
        self.p, self.items, self.narrow = p, [x.strip() for x in items if x.strip()], False

    def pop(self, n=1):
        for _ in range(n):
            if self.items:
                x = self.items.pop(0)
                if ' exec,' in x:
                    self.narrow = not x.endswith('exec, -1')
                self.p(x)

    def restore(self):
        while self.narrow:
            self.pop()


class Prof:
    def __init__(self, p, S, n, on):
        self.p, self.on, self.n = p, on, n
        self.trace = None
        if on:
            self.acc = [S.get(1) for _ in range(n)]
            self.t = S.get(2)
            self.last = S.get(1)

    def init(self):
        if self.on:
            for a in self.acc:
                self.p(f's_mov_b32 {a}, 0')
            self.p(f's_memtime {self.t}\ns_waitcnt lgkmcnt(0)\ns_mov_b32 {self.last}, {self.t[0]}')

    def stamp(self, k):
        if self.trace is not None:
            self.p(f's_memtime {self.t}\ns_waitcnt lgkmcnt(0)\nv_writelane_b32 {self.trace}, {self.t[0]}, {k}')
            return
        if self.on and (self.on is True or k in self.on):
            self.p(f's_memtime {self.t}\ns_waitcnt lgkmcnt(0)\ns_sub_u32 {self.last}, {self.t[0]}, {self.last}\n'
                   f's_add_u32 {self.acc[k]}, {self.acc[k]}, {self.last}\ns_mov_b32 {self.last}, {self.t[0]}')

    def count(self, k, s):
        if self.trace is not None:
            self.p(f'v_writelane_b32 {self.trace}, {s}, {k}')
        elif self.on:
            self.p(f's_add_u32 {self.acc[k]}, {self.acc[k]}, {s}')

    def dump(self, srd, vtmp, vtmp2, sbase):
        if self.on:
            p = self.p
            p(f'v_mov_b32 {vtmp}, 0')
            for k, a in enumerate(self.acc):
                p(f'v_writelane_b32 {vtmp}, {a}, {k}')
            p(f'v_mbcnt_lo_u32_b32 {vtmp2}, -1, 0\nv_mbcnt_hi_u32_b32 {vtmp2}, -1, {vtmp2}\nv_lshlrev_b32 {vtmp2}, 2, {vtmp2}')
            p(f'buffer_store_dword {vtmp}, {vtmp2}, {srd}, {sbase} offen')


def gen_rec(p, C, DELTA, verify, prof=False, opt=None):
    o = dict(xpoll_at=8, xstep=3, odelay=0, noextra=False, own_pre=3, yretry=0, k_early=0, nok=False, nopub=False, trace=False, ydelay=0, zdelay=0, nsteps=L.NSEG + DELTA, wring=10)
    o.update(opt or {})
    NSTEP = o['nsteps']
    S = C.S
    V = Alloc('v', 1, 256)
    A = Alloc('a', 0, 256)
    ws, sW, sC = C.srd_ws, C.sW, C.sRole
    srd = S.get(4)
    sL, sG = S.get(1), S.get(1)
    t0, t1, t2, t3 = S.get(1), S.get(1), S.get(1), S.get(1)
    ptr = S.get(8, 4)

    def wfrag():
        try:
            return A.get(4, 4)
        except RuntimeError:
            return V.get(4, 4)

    WQK = [[wfrag() for k in range(20)] for i in range(3)]
    WV1 = [wfrag() for k in range(20)]
    WV2 = [wfrag() for k in range(10)]
    vLane, vL16 = V.get(1), V.get(1)
    p(f'''
    s_and_b32 {sL}, {sC}, 31
    s_lshr_b32 {sG}, {sC}, 5
    v_and_b32 {vLane}, 63, v0
    v_lshlrev_b32 {vL16}, 4, {vLane}
    s_load_dwordx8 {ptr}, {C.karg}, 16
    ''')
    vo = [V.get(1) for _ in range(3)]
    voo = [V.get(1) for _ in range(5)]
    vt, vu = V.get(1), V.get(1)
    vTR = [V.get(1), V.get(1)]
    vTRv = [V.get(1), V.get(1)]
    vTRo = [V.get(1), V.get(1)]
    vWOw = V.get(1)
    for i in range(3):
        p(f'''
        v_add_u32 {vt}, {64 * i}, {vLane}
        v_mul_u32_u24 {vo[i]}, 0x1556, {vt}
        v_lshrrev_b32 {vo[i]}, 16, {vo[i]}
        v_mul_u32_u24 {vu}, 12, {vo[i]}
        v_sub_u32 {vt}, {vt}, {vu}
        v_mul_u32_u24 {vo[i]}, 12288, {vo[i]}
        v_lshl_add_u32 {vo[i]}, {vt}, 4, {vo[i]}
        ''')
    for i in range(5):
        p(f'''
        v_add_u32 {vt}, {64 * i}, {vLane}
        v_mul_u32_u24 {voo[i]}, 0x199a, {vt}
        v_lshrrev_b32 {voo[i]}, 16, {voo[i]}
        v_mul_u32_u24 {vu}, 10, {voo[i]}
        v_sub_u32 {vt}, {vt}, {vu}
        v_mul_u32_u24 {voo[i]}, 1280, {voo[i]}
        v_lshl_add_u32 {voo[i]}, {vt}, 4, {voo[i]}
        ''')
    p(f'''
    v_lshrrev_b32 {vt}, 4, {vLane}
    v_bfe_u32 {vu}, {vLane}, 2, 2
    v_lshl_add_u32 {vTR[0]}, {vt}, 3, {vu}
    v_lshl_add_u32 {vTRo[0]}, {vt}, 2, {vu}
    v_mul_u32_u24 {vTR[0]}, 192, {vTR[0]}
    v_mul_u32_u24 {vTRo[0]}, 160, {vTRo[0]}
    v_and_b32 {vt}, 3, {vLane}
    v_lshl_add_u32 {vTR[0]}, {vt}, 3, {vTR[0]}
    s_mul_i32 {t2}, {sW}, 15360
    v_add_u32 {vTRo[0]}, {t2}, {vTRo[0]}
    v_add_u32 {vWOw}, {t2}, {vL16}
    v_lshl_add_u32 {vTRo[1]}, {vt}, 3, {vTRo[0]}
    v_lshl_add_u32 {vTRo[0]}, {vt}, 4, {vTRo[0]}
    s_lshl_b32 {t2}, {sW}, 5
    v_add_u32 {vTRv[0]}, {t2}, {vTR[0]}
    s_and_b32 {t1}, {sW}, 1
    s_lshl_b32 {t2}, {t1}, 5
    s_add_u32 {t2}, {t2}, 128
    v_add_u32 {vTRv[1]}, {t2}, {vTR[0]}
    s_lshr_b32 {t0}, {sW}, 1
    s_mul_i32 {t2}, {t0}, 30720
    s_mul_i32 {t3}, {t1}, 96
    s_add_u32 {t2}, {t2}, {t3}
    v_add_u32 {vTR[0]}, {t2}, {vTR[0]}
    v_add_u32 {vTR[1]}, {BUF}, {vTR[0]}
    s_waitcnt lgkmcnt(0)
    ''')
    sHJ, sWo = S.get(1), S.get(1)
    p(f'''
    s_mul_i32 {sHJ}, {sC}, 192
    s_lshr_b32 {t0}, {sC}, 3
    s_lshl_b32 {t0}, {t0}, 2
    s_add_u32 {t0}, {t0}, {sW}
    s_mul_i32 {sWo}, {t0}, {192 * 1280}
    s_and_b32 {t0}, {sC}, 7
    s_mul_i32 {t0}, {t0}, 160
    s_add_u32 {sWo}, {sWo}, {t0}
    ''')
    WBYTES = 640 * 6144 * 2

    def set_srd(kind):
        if kind == 'qk':
            p(f's_cmp_lt_u32 {sW}, 2\ns_cselect_b32 {srd[0]}, {ptr[0]}, {ptr[2]}\ns_cselect_b32 {srd[1]}, {ptr[1]}, {ptr[3]}')
        elif kind == 'v':
            p(f's_mov_b32 {srd[0]}, {ptr[4]}\ns_mov_b32 {srd[1]}, {ptr[5]}')
        else:
            p(f's_mov_b32 {srd[0]}, {ptr[6]}\ns_mov_b32 {srd[1]}, {ptr[7]}')
        p(f's_mov_b32 {srd[2]}, {WBYTES}\ns_mov_b32 {srd[3]}, 0x20000')

    chunks = [('qk', 0), ('qk', 1), ('qk', 2), ('qk', 3), ('v', 0), ('v', 1), ('o', 0), ('o', 1)]

    def issue(k):
        kind, ci = chunks[k]
        set_srd(kind)
        b = k & 1
        p(f's_mul_i32 {t0}, {sW}, 15360\ns_add_u32 {t0}, {t0}, {b * BUF}')
        if kind == 'qk':
            p(f's_and_b32 {t1}, {sW}, 1\ns_mul_i32 {t1}, {t1}, {80 * 12288}\ns_add_u32 {t1}, {t1}, {160 * ci * 12288}\ns_add_u32 {t1}, {t1}, {sHJ}')
        elif kind == 'v':
            p(f's_mul_i32 {t1}, {sW}, {80 * 12288}\ns_add_u32 {t1}, {t1}, {320 * ci * 12288}\ns_add_u32 {t1}, {t1}, {sHJ}')
        else:
            p(f's_add_u32 {t1}, {sWo}, {96 * ci * 1280}')
        for i in range(15):
            p(f's_add_u32 m0, {t0}, {i * 1024}')
            if kind == 'o':
                p(f's_add_u32 {t2}, {t1}, {(i // 5) * 32 * 1280}')
                p(f'buffer_load_dwordx4 {voo[i % 5]}, {srd}, {t2} offen lds')
            else:
                p(f's_add_u32 {t2}, {t1}, {(i // 3) * 16 * 12288}')
                p(f'buffer_load_dwordx4 {vo[i % 3]}, {srd}, {t2} offen lds')

    vtmp = V.get(60, 4)

    def per_wave(body, join=True):
        need = join
        join = p.uid('Lpw')
        for w in range(4):
            nxt = p.uid('Lpwn')
            if w < 3:
                p(f's_cmp_eq_u32 {sW}, {w}\ns_cbranch_scc0 {nxt}')
            body(w)
            if w < 3:
                if need:
                    p(f's_branch {join}')
                p.label(nxt)
        if need:
            p.label(join)

    def reads(k):
        kind, ci = chunks[k]
        b = k & 1
        if kind == 'qk':
            def body(w):
                q = (ci - w) & 3
                for kl in range(5):
                    for i in range(3):
                        for hf in range(2):
                            p(f'ds_read_b64_tr_b16 {WQK[i][5 * q + kl].sub(2 * hf, 2)}, {vTR[b]} offset:{(32 * kl + 4 * hf) * 192 + 32 * i}')
            per_wave(body)
        elif kind == 'v':
            if b:
                p(f'v_add_u32 {vTRv[0]}, {BUF}, {vTRv[0]}\nv_add_u32 {vTRv[1]}, {BUF}, {vTRv[1]}')

            def body(w):
                for kl in range(10):
                    sl = (10 * ci + kl - 5 * w) % 20
                    for hf in range(2):
                        p(f'ds_read_b64_tr_b16 {WV1[sl].sub(2 * hf, 2)}, {vTRv[0]} offset:{(32 * kl + 4 * hf) * 192}')
                        if sl < 10:
                            p(f'ds_read_b64_tr_b16 {WV2[sl].sub(2 * hf, 2)}, {vTRv[1]} offset:{(32 * kl + 4 * hf) * 192}')
            per_wave(body)
        else:
            if b:
                p(f'v_add_u32 {vTRo[0]}, {BUF}, {vTRo[0]}\nv_add_u32 {vTRo[1]}, {BUF}, {vTRo[1]}\nv_add_u32 {vWOw}, {BUF}, {vWOw}')
            for f in range(3):
                for t in range(5):
                    for hf in range(2):
                        col = 64 * (t >> 1) + 8 * (t & 1) if t < 4 else 128
                        p(f'ds_read_b64_tr_b16 {vtmp.sub((f * 5 + t) * 4 + 2 * hf, 2)}, {vTRo[t >> 2]} offset:{16 * TAU[f][hf] * 160 + col}')
        p('s_waitcnt lgkmcnt(0)\ns_barrier')
        if kind == 'o':
            for q in range(15):
                p(f'ds_write_b128 {vWOw}, {vtmp.sub(q * 4, 4)} offset:{q * 1024}')

    issue(0)
    for k in range(8):
        if k + 1 < 8:
            issue(k + 1)
            p('s_waitcnt vmcnt(15)')
        else:
            p('s_waitcnt vmcnt(0)')
        p('s_barrier')
        reads(k)
    p('s_waitcnt lgkmcnt(0)')
    V.free(vtmp, *vo, *voo, vt, vu, *vTR, *vTRo, *vTRv, vWOw)
    verify()

    vHi, vL8 = V.get(1), V.get(1)
    vM = [V.get(1) for _ in range(4)]
    vQW = [V.get(1) for _ in range(2)]
    vWO = [V.get(1), V.get(1)]
    vUW, vVP, vRW, vRW2, vRR = V.get(1), V.get(1), V.get(1), V.get(1), V.get(1)
    vYW, vZW = V.get(1), V.get(1)
    vFa, vFthr, vF = V.get(1), V.get(1), V.get(1)
    m0r = V.get(2, 2)
    Kx = V.get(12, 2)
    Vx = V.get(16, 2)
    bias = V.get(4, 2)
    P1, P2 = V.get(4, 2), V.get(4, 2)
    sel, selh = V.get(4, 2), V.get(4, 2)
    vm = V.get(4, 2)
    ones = V.get(4, 2)
    one16 = V.get(4, 2)
    sT, sRed, sTo = S.get(1), S.get(1), S.get(1)
    bZ, bZW, bXown, bXpeer, bYW, bYW2, bYR, bYR2, bK, bV1, bV2, bKM, bF, bOW, bOR = (S.get(1) for _ in range(15))
    sZ, sZ2, sZw, sZr, sX, sXr, sY, sYr, sO, sOr = (S.get(1) for _ in range(10))
    sK, sV0, sV1, sKM = (S.get(1) for _ in range(4))
    sCexp = S.get(1)
    x0, x1, x2 = V.get(1), V.get(1), V.get(1)
    cbits = struct.unpack('<I', struct.pack('<f', (192 ** -0.5) * 1.4426950408889634))[0]
    p(f'''
    s_mov_b32 {sCexp}, {cbits:#x}
    v_lshlrev_b32 {vL8}, 3, {vLane}
    v_add_u32 {vHi}, {MEM_LDS}, {vL16}
    v_add_u32 {vVP}, {MEM_LDS + VP}, {vL8}
    s_mul_i32 {t0}, {sW}, 5120
    s_mul_i32 {t1}, {sG}, {4 * L.ZB_SLOT}
    s_add_u32 {t1}, {t1}, {L.ZB}
    s_add_u32 {bZ}, {t0}, {t1}
    ''')
    for q in range(4):
        p(f's_add_u32 {t0}, {sW}, {q}\ns_and_b32 {t0}, {t0}, 3\ns_mul_i32 {t0}, {t0}, 5120\nv_add_u32 {vM[q]}, {t0}, {vHi}')
    for i in range(2):
        o0 = (i >> 1) * 1024 + (i & 1) * 8
        o1 = ((3 + i) >> 1) * 1024 + ((3 + i) & 1) * 8
        p(f'''
        s_bitcmp1_b32 {sW}, 0
        s_mov_b32 {t1}, {o0 + QKX}
        s_cselect_b32 {t0}, {o1 + QKX}, {t1}
        s_lshr_b32 {t1}, {sW}, 1
        s_mul_i32 {t1}, {t1}, 3072
        s_add_u32 {t0}, {t0}, {t1}
        v_add_u32 {vQW[i]}, {t0}, {vHi}
        ''')
    p(f'''
    s_and_b32 {t3}, {sW}, 1
    s_lshl_b32 {t1}, {t3}, 10
    v_add_u32 {vUW}, {t1}, {vHi}
    s_mul_i32 {t0}, {sC}, 3072
    s_add_u32 {bXown}, {t0}, {L.XB}
    s_xor_b32 {t1}, {sC}, 1
    s_mul_i32 {t1}, {t1}, 3072
    s_add_u32 {bXpeer}, {t1}, {L.XB}
    s_min_u32 {t1}, {sW}, 2
    s_lshl_b32 {t1}, {t1}, 10
    s_add_u32 {t1}, {t1}, {t0}
    s_cmp_eq_u32 {sW}, 3
    s_cselect_b32 {t2}, 8, 0
    s_add_u32 {t1}, {t1}, {t2}
    s_add_u32 {bOW}, {t1}, {L.OB}
    s_lshr_b32 {t1}, {sC}, 3
    s_lshl_b32 {t1}, {t1}, 2
    s_add_u32 {t1}, {t1}, {sW}
    s_mul_i32 {t1}, {t1}, 6144
    s_add_u32 {bOR}, {t1}, {L.OB}
    s_mul_i32 {t1}, {sW}, 15360
    v_add_u32 {vWO[0]}, {t1}, {vL16}
    v_add_u32 {vWO[1]}, {BUF}, {vWO[0]}
    v_lshrrev_b32 {x0}, 4, {vLane}
    v_and_b32 {x1}, 15, {vLane}
    s_lshl_b32 {t1}, {sW}, 8
    s_add_u32 {t1}, {t1}, {MEM_LDS + RX}
    v_lshl_add_u32 {vRW2}, {x1}, 4, {t1}
    v_lshl_add_u32 {vRW}, {x0}, 10, {vRW2}
    v_lshrrev_b32 {x2}, 5, {vLane}
    v_lshl_add_u32 {vRW2}, {x2}, 10, {vRW2}
    v_bfe_u32 {vF}, {vLane}, 4, 1
    v_lshl_add_u32 {vRW2}, {vF}, 3, {vRW2}
    s_lshl_b32 {t1}, {sW}, 11
    v_add_u32 {vRR}, {t1}, {vHi}
    v_lshlrev_b32 {vYW}, 10, {x2}
    v_lshl_add_u32 {vYW}, {x1}, 4, {vYW}
    v_lshl_add_u32 {vYW}, {vF}, 3, {vYW}
    s_and_b32 {t1}, {sC}, 7
    s_mul_i32 {t1}, {t1}, {10 * 1024}
    s_bfe_u32 {t2}, {sC}, 0x20003
    s_lshl_b32 {t2}, {t2}, 8
    s_add_u32 {t1}, {t1}, {t2}
    s_mul_i32 {t2}, {sG}, 81920
    s_add_u32 {t1}, {t1}, {t2}
    s_add_u32 {t1}, {t1}, {L.YB}
    s_add_u32 {bYW2}, {t1}, {8 * 1024}
    s_lshl_b32 {t2}, {sW}, 11
    s_add_u32 {bYW}, {t1}, {t2}
    s_lshl_b32 {t0}, {sW}, 5
    s_add_u32 {t0}, {t0}, {sL}
    s_cmp_lt_u32 {t0}, 80
    s_cselect_b32 {sRed}, 1, 0
    s_cselect_b32 {t0}, {t0}, 0
    s_lshl_b32 {t1}, {t0}, 10
    s_cmp_eq_u32 {sG}, 0
    s_mov_b32 {t2}, {L.YB}
    s_cselect_b32 {bYR}, {L.YL}, {t2}
    s_mov_b32 {t2}, {L.YL + 81920}
    s_cselect_b32 {bYR2}, {L.YB + 81920}, {t2}
    s_add_u32 {bYR}, {bYR}, {t1}
    s_add_u32 {bYR2}, {bYR2}, {t1}
    s_lshl_b32 {t1}, {t0}, 8
    s_mul_i32 {t2}, {sG}, {4 * L.ZB_SLOT}
    s_add_u32 {t1}, {t1}, {t2}
    s_add_u32 {bZW}, {t1}, {L.ZB}
    v_lshlrev_b32 {vZW}, 4, {x1}
    v_lshl_add_u32 {vZW}, {x0}, 3, {vZW}
    s_load_dwordx2 {ptr[0:2]}, {C.karg}, 8
    v_and_b32 {x2}, 7, {vLane}
    v_mul_u32_u24 {x2}, 1280, {x2}
    v_lshl_add_u32 {x2}, {x0}, 3, {x2}
    s_lshl_b32 {t1}, {t0}, 4
    v_add_u32 {x2}, {t1}, {x2}
    s_waitcnt lgkmcnt(0)
    s_mov_b32 {srd[0]}, {ptr[0]}
    s_mov_b32 {srd[1]}, {ptr[1]}
    s_mov_b32 {srd[2]}, 10240
    s_mov_b32 {srd[3]}, 0x20000
    buffer_load_dwordx2 {m0r}, {x2}, {srd}, 0 offen
    s_mul_i32 {t0}, {sC}, 6144
    s_lshl_b32 {t2}, {t3}, 10
    s_add_u32 {bK}, {t2}, {t0}
    s_lshl_b32 {t2}, {sW}, 10
    s_add_u32 {bV1}, {t2}, {t0}
    s_add_u32 {t2}, {t3}, 4
    s_lshl_b32 {t2}, {t2}, 10
    s_add_u32 {bV2}, {t2}, {t0}
    s_mul_i32 {t0}, {sC}, 3072
    s_add_u32 {bKM}, {t0}, {L.KM}
    s_lshl_b32 {bF}, {sC}, 2
    s_add_u32 {bF}, {bF}, {L.F_REC}
    s_mul_i32 {t0}, {sC}, 96
    v_and_b32 {vFa}, 3, {vLane}
    v_mul_u32_u24 {vFa}, 48, {vFa}
    v_min_u32 {vFa}, 95, {vFa}
    v_add_u32 {vFa}, {t0}, {vFa}
    v_lshrrev_b32 {vFa}, 6, {vFa}
    v_bfe_u32 {vF}, {vLane}, 2, 1
    v_add_u32 {vF}, 1, {vF}
    v_mul_u32_u24 {vF}, 96, {vF}
    v_add_u32 {vFa}, {vF}, {vFa}
    v_bfe_u32 {vF}, {vLane}, 3, 1
    v_lshl_add_u32 {vFa}, {vF}, 9, {vFa}
    v_lshlrev_b32 {vFa}, 2, {vFa}
    v_add_u32 {vFa}, {L.F_QKV}, {vFa}
    v_mul_u32_u24 {vFthr}, {DELTA}, {vF}
    v_sub_u32 {vFthr}, 1, {vFthr}
    ; constants
    v_lshrrev_b32 {x2}, 5, {vLane}
    v_bfe_u32 {vF}, {vLane}, 3, 1
    v_cmp_eq_u32 vcc, {x2}, {vF}
    v_mov_b32 {x2}, 0xf149f2ca
    v_cndmask_b32 {bias[0]}, {x2}, 0, vcc
    ''')
    for r in range(1, 4):
        p(f'v_mov_b32 {bias[r]}, {bias[0]}')
    for r in range(4):
        p(f'v_mov_b32 {P1[r]}, 0\nv_mov_b32 {P2[r]}, 0\nv_mov_b32 {ones[r]}, -1\nv_mov_b32 {one16[r]}, 0x3f803f80\nv_mov_b32 {vm[r]}, 0')
        for sl, off in ((sel, 0), (selh, 8)):
            p(f'''
            v_mov_b32 {sl[r]}, 0
            v_mov_b32 {x2}, 0x3f80
            v_cmp_eq_u32 vcc, {2 * r + off}, {x1}
            v_cndmask_b32 {sl[r]}, {sl[r]}, {x2}, vcc
            v_mov_b32 {x2}, 0x3f800000
            v_cmp_eq_u32 vcc, {2 * r + 1 + off}, {x1}
            v_cndmask_b32 {sl[r]}, {sl[r]}, {x2}, vcc
            ''')
    p(f's_mov_b32 {sT}, 0')
    V.free(x0, x1, x2, vLane)
    S.free(ptr, sHJ, sWo, sL, sG)
    pr = Prof(p, S, 18, prof)
    if o['trace']:
        pr.trace = V.get(1)
        vTr = V.get(1)
        sTr = S.get(1)
        p(f'v_lshrrev_b32 {vTr}, 2, {vL16}\nv_mov_b32 {pr.trace}, 0')
        p(f's_lshl_b32 {sTr}, {sC}, 2\ns_add_u32 {sTr}, {sTr}, {sW}\ns_mul_i32 {sTr}, {sTr}, {96 * 256}\ns_add_u32 {sTr}, {sTr}, {L.TRACE}')

    def seg_offsets(tn):
        return f'''s_add_u32 {t0}, {sT}, {tn}
        s_mul_i32 {sV0}, {t0}, {L.SEG_F}
        s_add_u32 {sV0}, {sV0}, {L.VF[0]}
        s_cmp_lt_u32 {t0}, {L.NSEG}
        s_cselect_b32 {sV0}, {sV0}, {OOB}
        s_sub_u32 {t1}, {t0}, {DELTA}
        s_mul_i32 {sV1}, {t1}, {L.SEG_F}
        s_add_u32 {sV1}, {sV1}, {L.VF[1]}
        s_cmp_lt_u32 {t1}, {L.NSEG}
        s_cselect_b32 {sV1}, {sV1}, {OOB}
        s_add_u32 {t0}, {sV0}, {(L.KF[0] - L.VF[0]) & 0xffffffff}
        s_add_u32 {t1}, {sV1}, {(L.KF[1] - L.VF[1]) & 0xffffffff}
        s_cmp_lt_u32 {sW}, 2
        s_cselect_b32 {sK}, {t0}, {t1}
        s_add_u32 {sK}, {sK}, {bK}'''.split('\n')

    def slot_offsets(tn):
        return f'''
        s_add_u32 {sKM}, {sT}, {tn}
        s_and_b32 {t0}, {sKM}, 3
        s_mul_i32 {t1}, {t0}, {L.ZB_SLOT}
        s_add_u32 {sZ}, {t1}, {bZ}
        s_add_u32 {sZ2}, {sZ}, 4096
        s_add_u32 {sZw}, {t1}, {bZW}
        s_mul_i32 {sY}, {t0}, {L.YB_SLOT}
        s_xor_b32 {t1}, {t0}, 2
        s_mul_i32 {sYr}, {t1}, {L.YB_SLOT}
        s_add_u32 {t0}, {t0}, 3
        s_and_b32 {t0}, {t0}, 3
        s_mul_i32 {t1}, {t0}, {L.ZB_SLOT}
        s_add_u32 {sZr}, {t1}, {bZW}
        s_and_b32 {t0}, {sKM}, 1
        s_mul_i32 {sX}, {t0}, {L.XB_SLOT}
        s_xor_b32 {t0}, {t0}, 1
        s_mul_i32 {sXr}, {t0}, {L.XB_SLOT}
        s_mul_i32 {sKM}, {sKM}, {L.KM_STEP}
        '''

    def timeout():
        p(f's_add_u32 {sTo}, {sTo}, 1\ns_cmp_gt_u32 {sTo}, {TIMEOUT}\ns_cbranch_scc1 {C.fail}')

    def wait_flags(have_value, redo=()):
        lab, ok = p.uid('Lfl'), p.uid('Lflok')
        x = V.get(1)
        p(f's_mov_b32 {sTo}, 0\nv_min_i32 {x}, {L.NSEG}, {vFthr}')
        if have_value:
            p(f'v_cmp_ge_i32 vcc, {vF}, {x}\ns_cmp_eq_u64 vcc, -1\ns_cbranch_scc1 {ok}')
        p.label(lab)
        timeout()
        p(f'''
        buffer_load_dword {vF}, {vFa}, {ws}, 0 offen sc1
        s_waitcnt vmcnt(0)
        v_cmp_ge_i32 vcc, {vF}, {x}
        s_cmp_eq_u64 vcc, -1
        s_cbranch_scc0 {lab}
        ''')
        p('\n'.join(redo))
        p.label(ok)
        p(f'v_add_u32 {vFthr}, 1, {vFthr}')
        V.free(x)

    def k_loads():
        return [f'buffer_load_dwordx4 {Kx.sub(0, 4)}, {vL16}, {ws}, {sK} offen sc1',
                f'buffer_load_dwordx4 {Kx.sub(4, 4)}, {vL16}, {ws}, {sK} offen offset:2048 sc1',
                f's_add_u32 {t0}, {sK}, 4096\nbuffer_load_dwordx4 {Kx.sub(8, 4)}, {vL16}, {ws}, {t0} offen sc1']

    wait_flags(False)
    p('\n'.join(seg_offsets(0) + k_loads()))
    p(slot_offsets(0))
    p(f's_cmp_eq_u32 {C.sMode}, 0\ns_cbranch_scc0 L_rec_remote')
    YD = L.YL - L.YB
    assert L.XB_SLOT == L.OB_SLOT

    def step_loop(w, local):
        loc = '' if local else ' sc1'
        top = f'L_rec_top_{w}{"l" if local else "r"}'
        stubs = []
        p('s_waitcnt vmcnt(0)')
        if w < 3:
            skip = p.uid('Lz0')
            p(f"""
            s_cmp_eq_u32 {sRed}, 0
            s_cbranch_scc1 {skip}
            s_mov_b64 exec, 0xffffffff
            buffer_store_dwordx2 {m0r}, {vZW}, {ws}, {bZW} offen{loc}
            s_mov_b64 exec, -1
            """)
            p.label(skip)
        p('s_barrier')
        pr.init()
        if prof:
            p(f's_sub_u32 {pr.acc[11]}, {pr.t[0]}, {C.tstart[0]}')
        p.label(top)

        def check4(acc, r, lab):
            return [f'v_max3_u32 {acc}, {r[0]}, {r[1]}, {r[2]}', f'v_max_u32 {acc}, {acc}, {r[3]}',
                    f'v_cmp_eq_u32 vcc, -1, {acc}', f's_cbranch_vccnz {lab}']

        def weave(ms, fs):
            fs = list(fs)
            for i, m in enumerate(ms):
                p(m)
                n = -(-len(fs) // (len(ms) - i))
                for _ in range(n):
                    p(fs.pop(0))

        z = V.get(20, 2)
        zc = V.get(1)
        ring = V.get(16, 2)
        qk = V.get(12, 2)
        x0 = V.get(1)

        def zload(i):
            return f'buffer_load_dwordx4 {z.sub(4 * i, 4)}, {vL16}, {ws}, {sZ if i < 4 else sZ2} offen offset:{1024 * (i & 3)} sc1'

        def qkm(s_, b):
            return [mf32(qk.sub(4 * i, 4), WQK[i][s_], b, 0 if s_ == 0 else qk.sub(4 * i, 4)) for i in range(3)]

        def mread(dst, s_):
            p(f'ds_read_b128 {dst}, {vM[s_ // 5]} offset:{1024 * (s_ % 5)}')
        if o['zdelay']:
            p(f's_sleep {o["zdelay"]}')
        for i in range(5):
            p(zload(i))
        p(f's_mov_b32 {sTo}, 0')
        for i in range(5):
            back, stub = p.uid('Lz'), p.uid('Lzs')
            p.label(back)
            p(f's_waitcnt vmcnt({4 - i})')
            p(f'ds_write_b128 {vM[0]}, {z.sub(4 * i, 4)} offset:{1024 * i}')
            chk = check4(zc, z.sub(4 * i, 4), stub)
            stubs.append((stub, [zload(k) for k in range(i, 5)], back))
            if i == 0:
                weave(qkm(0, z.sub(0, 4)), chk)
            else:
                p('\n'.join(chk))
                if i < o['own_pre']:
                    p('\n'.join(qkm(i, z.sub(4 * i, 4))))
        p('s_waitcnt lgkmcnt(0)\ns_barrier')
        pr.count(12, sTo)
        pr.stamp(0)
        vmem = []
        if w == 0:
            vmem.append(f's_mov_b64 exec, 1\nv_mov_b32 {x0}, {sT}\nbuffer_store_dword {x0}, off, {ws}, {bF} sc1\ns_mov_b64 exec, -1')
        for q, sv in enumerate((sV0, sV1)):
            vmem.append(f's_add_u32 {t0}, {sv}, {bV1}\nbuffer_load_dwordx4 {Vx.sub(8 * q, 4)}, {vL16}, {ws}, {t0} offen sc1')
            if w < 2:
                vmem.append(f's_add_u32 {t0}, {sv}, {bV2}\nbuffer_load_dwordx4 {Vx.sub(8 * q + 4, 4)}, {vL16}, {ws}, {t0} offen sc1')
        if w > 0:
            vmem.append(f's_add_u32 {t0}, {bXown}, {sXr}\nbuffer_store_dwordx4 {ones}, {vL16}, {ws}, {t0} offen offset:{1024 * (w - 1)}{loc}')
            vmem.append(f's_add_u32 {t0}, {bXown}, {sXr}\ns_add_u32 {t0}, {t0}, {L.OB - L.XB}\n'
                        f'buffer_store_dwordx4 {ones}, {vL16}, {ws}, {t0} offen offset:{1024 * (w - 1)}{loc}')
        for b_ in ([bYW, bYW2] if w == 3 else [bYW]):
            vmem.append(f's_add_u32 {t0}, {b_}, {sYr}\nbuffer_store_dwordx2 {ones.sub(0, 2)}, {vYW}, {ws}, {t0} offen sc1')
            vmem.append(f's_add_u32 {t0}, {t0}, {YD}\nbuffer_store_dwordx2 {ones.sub(0, 2)}, {vYW}, {ws}, {t0} offen{loc}')
        so = seg_offsets(1)
        vmem += ['\n'.join(so[0:5]), '\n'.join(so[5:10]), '\n'.join(so[10:15])]
        PQ = 3
        for k in range(5, 5 + PQ):
            mread(ring.sub(4 * (k & 3), 4), k)
        for k in range(o['own_pre'], 20):
            if k >= 5:
                if k + PQ < 20:
                    mread(ring.sub(4 * ((k + PQ) & 3), 4), k + PQ)
                p(f's_waitcnt lgkmcnt({min(PQ, 19 - k)})')
            fs = vmem.pop(0).split('\n') if vmem else []
            weave(qkm(k, z.sub(4 * k, 4) if k < 5 else ring.sub(4 * (k & 3), 4)), fs)
        assert not vmem
        V.free(x0, z, zc)
        qb = V.get(6, 2)
        for i in range(3):
            p(cvt2(qb.sub(2 * i, 2), qk.sub(4 * i, 4)))
            p(f'ds_write_b64 {vQW[i & 1]}, {qb.sub(2 * i, 2)} offset:{1024 * (i >> 1)}')
        p(f's_add_u32 {t1}, {sX}, {bXown}\ns_add_u32 {t2}, {sX}, {bXpeer}')
        p('s_waitcnt lgkmcnt(0)\ns_barrier')
        V.free(qb, qk)
        pr.stamp(1)
        st, su = V.get(4, 2), V.get(4, 2)
        qf, kf = V.get(12, 2), V.get(12, 2)
        for i in range(3):
            p(f'ds_read_b128 {qf.sub(4 * i, 4)}, {vHi} offset:{QKX + 1024 * i}')
        for i in range(3):
            p(f'ds_read_b128 {kf.sub(4 * i, 4)}, {vHi} offset:{QKX + 3072 + 1024 * i}')
        PD = 3
        for k in range(PD):
            mread(ring.sub(4 * k, 4), k)
        for i in range(3):
            p(f's_waitcnt lgkmcnt({5 + PD - i})')
            p(mf32(su, Kx.sub(4 * i, 4), qf.sub(4 * i, 4), 0 if i == 0 else su))
        for i in range(3):
            p(f's_waitcnt lgkmcnt({2 + PD - i})')
            p(mf32(st, kf.sub(4 * i, 4), qf.sub(4 * i, 4), bias if i == 0 else st))
            if i == 1:
                m = '0x00ff00ff' if w < 2 else '0xff00ff00'
                p(f's_mov_b32 exec_lo, {m}\ns_mov_b32 exec_hi, {m}')
        p(f'buffer_store_dwordx4 {su}, {vL16}, {ws}, {t1} offen offset:{1024 * (w & 1)}{loc}')
        p(f'ds_write_b128 {vUW}, {su} offset:{UX}\ns_mov_b64 exec, -1')
        V.free(qf, kf, su)
        pr.stamp(2)
        xs = V.get(12, 2)
        va = V.get(8, 2)
        uo = V.get(8, 2)
        vo2 = V.get(4, 2)

        def xload(i):
            return f'buffer_load_dwordx4 {xs.sub(4 * i, 4)}, {vL16}, {ws}, {t2} offen offset:{1024 * i} sc1'

        lq = ['r0', 'r1', 'r2', 'U']

        def lwait(tag):
            p(f's_waitcnt lgkmcnt({len(lq) - 1 - lq.index(tag)})')
        xl = {o['xpoll_at'] + o['xstep'] * i: xload(i) for i in range(3)}
        xl[2] = f'buffer_load_dword {vF}, {vFa}, {ws}, 0 offen sc1'
        for k in range(20):
            if k + PD < 20:
                mread(ring.sub(4 * ((k + PD) & 3), 4), k + PD)
                lq.append(f'r{k + PD}')
            lwait(f'r{k}')
            p(mf32(va.sub(0, 4), ring.sub(4 * (k & 3), 4), WV1[k], 0 if k == 0 else va.sub(0, 4)))
            if k < 10:
                p(mf32(va.sub(4, 4), ring.sub(4 * (k & 3), 4), WV2[k], 0 if k == 0 else va.sub(4, 4)))
            if k == 0 and w == 3:
                p(f'buffer_store_dwordx4 {st}, {vL16}, {ws}, {t1} offen offset:2048{loc}')
            if k == 4:
                p('s_barrier')
                p(f'ds_read_b128 {uo.sub(0, 4)}, {vHi} offset:{UX}\nds_read_b128 {uo.sub(4, 4)}, {vHi} offset:{UX + 1024}')
                lq += ['u0', 'u1']
            if k == 12 and w >= 2:
                p(f'ds_write_b128 {vUW}, {va.sub(4, 4)} offset:{VX}')
                lq.append('V')
            if k == 17:
                p('s_barrier')
                if w < 2:
                    p(f'ds_read_b128 {vo2}, {vUW} offset:{VX}')
                    lq.append('v')
            if k in xl:
                p(xl.pop(k))
            if k == 18:
                assert not xl
                p('s_waitcnt vmcnt(3)')
                wait_flags(True, redo=[xload(i) for i in range(3)])
        assert not xl
        V.free(ring)
        pr.stamp(3)
        sc = V.get(12, 2)
        mx, m2, m3 = V.get(1), V.get(1), V.get(1)
        lf, lfs, lfok = p.uid('Lf'), p.uid('Lfs'), p.uid('Lfok')
        p(f's_mov_b32 {sTo}, 0')
        p.label(lf)
        for i in range(3):
            p(f's_waitcnt vmcnt({2 - i})')
            for r in range(4):
                p(f'v_add_f32 {sc[4 * i + r]}, {uo[4 * i + r] if i < 2 else st[r]}, {xs[4 * i + r]}')
            if i == 1:
                p(f'v_maximum3_f32 {mx}, {sc[0]}, {sc[1]}, {sc[2]}\nv_maximum3_f32 {m2}, {sc[3]}, {sc[4]}, {sc[5]}')
                p(f'v_maximum3_f32 {mx}, {mx}, {sc[6]}, {sc[7]}')
        p(f"""
        v_maximum3_f32 {m2}, {m2}, {sc[8]}, {sc[9]}
        v_maximum3_f32 {mx}, {mx}, {sc[10]}, {sc[11]}
        v_maximum3_f32 {mx}, {mx}, {m2}, {m2}
        v_cmp_u_f32 vcc, {mx}, {mx}
        v_mov_b32 {m2}, {mx}
        s_cbranch_vccnz {lfs}
        """)
        p.label(lfok)
        q_ = Prog()
        maxchain(q_, m3, xs)
        q_(f'v_cmp_eq_u32 vcc, -1, {m3}\ns_cbranch_vccz {lfok}')
        stubs.append((lfs, [x.text for x in q_.ins] + [xload(i) for i in range(3)], lf))
        V.free(xs, st, uo)
        pr.count(13, sTo)
        pr.stamp(4)
        p(f"""
        v_permlane32_swap_b32 {mx}, {m2}
        v_max_f32 {mx}, {mx}, {m2}
        v_mov_b32 {m2}, {mx}
        v_cvt_pk_bf16_f32 {vm[0]}, {va[0]}, {va[1]}
        v_cvt_pk_bf16_f32 {vm[1]}, {va[2]}, {va[3]}
        v_permlane16_swap_b32 {mx}, {m2}
        v_max_f32 {mx}, {mx}, {m2}
        v_mul_f32 {mx}, {sCexp}, {mx}
        """)
        for r in range(12):
            p(f'v_fma_f32 {sc[r]}, {sc[r]}, {sCexp}, -{mx}')
        for r in range(8):
            p(f'v_exp_f32 {sc[r]}, {sc[r]}')
        Pm = V.get(2, 2)
        nt = 2 if w < 2 else 1
        oa = V.get(8, 2)
        ls = V.get(4, 2)
        p('s_mov_b32 exec_lo, 0x00ff00ff\ns_mov_b32 exec_hi, 0x00ff00ff')
        for r in range(4):
            p(f'v_cvt_pk_bf16_f32 {P1[r]}, {sc[2 * r]}, {sc[2 * r + 1]}')
        p('s_not_b64 exec, exec')
        for r in range(4):
            p(f'v_cvt_pk_bf16_f32 {P2[r]}, {sc[2 * r]}, {sc[2 * r + 1]}')
        p('s_mov_b64 exec, -1')
        m1 = [mf32(ls, one16, P1, 0)] + [mf32(oa.sub(4 * i, 4), Vx.sub(4 * i, 4), P1, 0) for i in range(nt)]
        m2_ = [mf32(ls, one16, P2, ls)] + [mf32(oa.sub(4 * i, 4), Vx.sub(8 + 4 * i, 4), P2, oa.sub(4 * i, 4)) for i in range(nt)]
        m3_ = [mf16(ls, one16.sub(0, 2), Pm, ls)] + [mf16(oa.sub(4 * i, 4), vm.sub(2 * i, 2), Pm, oa.sub(4 * i, 4)) for i in range(nt)]
        f1 = [f'v_exp_f32 {sc[r]}, {sc[r]}' for r in range(8, 12)]
        f2 = cvt2(Pm, sc.sub(8, 4)).split('\n')
        if w < 2:
            f2 += ['s_waitcnt lgkmcnt(0)'] + [f'v_add_f32 {va[4 + r]}, {va[4 + r]}, {vo2[r]}' for r in range(4)]
            f2 += cvt2(vm.sub(2, 2), va.sub(4, 4)).split('\n')
        weave(m1, f1)
        weave(m2_, f2)
        kl = k_loads()
        weave(m3_, [x for y_ in kl[:o['k_early']] for x in y_.split('\n')] + [f's_add_u32 {t0}, {sX}, {bOW}', f's_add_u32 {t2}, {sX}, {bOR}', f's_add_u32 {t3}, {t2}, 4096', f's_mov_b32 {sTo}, 0'])
        V.free(va, vo2)
        p(f'v_rcp_f32 {m2}, {ls[0]}')
        ob = V.get(4, 2)
        for i in range(nt):
            for r in range(4):
                p(f'v_mul_f32 {oa[4 * i + r]}, {oa[4 * i + r]}, {m2}')
            p(cvt2(ob.sub(2 * i, 2), oa.sub(4 * i, 4)))
        if w < 2:
            p(f'buffer_store_dwordx4 {ob}, {vL16}, {ws}, {t0} offen{loc}')
        else:
            p(f'buffer_store_dwordx2 {ob.sub(0, 2)}, {vL16}, {ws}, {t0} offen{loc}')
        V.free(sc, mx, m2, m3, Pm, oa, ob, ls)
        pr.stamp(5)
        of = V.get(24, 2)
        ya = V.get(20, 2)
        oc = V.get(1)
        NR = o['wring']
        slots = [Vx.sub(4 * i, 4) for i in range(4)]
        wr = V.get(4 * (NR - 4), 2)
        slots += [wr.sub(4 * i, 4) for i in range(NR - 4)]
        if w < 3:
            p(f'ds_write_b64 {vVP}, {vm.sub(0, 2)} offset:{512 * w}')
        if w < 2:
            p(f'ds_write_b64 {vVP}, {vm.sub(2, 2)} offset:{512 * (4 + w)}')

        def wread(q):
            return f'ds_read_b128 {slots[q % NR]}, {vWO[q // 15]} offset:{1024 * (q % 15)}'

        def oload(i):
            return f'buffer_load_dwordx4 {of.sub(4 * i, 4)}, {vL16}, {ws}, {t2 if i < 4 else t3} offen offset:{1024 * (i & 3)} sc1'
        for q in range(NR):
            p(wread(q))
        if o['odelay']:
            p(f's_sleep {o["odelay"]}')
        for i in range(6):
            p(oload(i))
        p('s_waitcnt lgkmcnt(0)')
        yb = V.get(10, 2) if False else None
        for k in range(6):
            if k == 0:
                back, stub = p.uid('Lo'), p.uid('Los')
                p.label(back)
                p('s_waitcnt vmcnt(5)')
                p('\n'.join(check4(oc, of.sub(0, 4), stub)))
                stubs.append((stub, [oload(i) for i in range(6)], back))
                pr.stamp(6)
            for t in range(5):
                q = 5 * k + t
                if q >= NR and (q - NR) % 2 == 0:
                    p(f's_waitcnt lgkmcnt({max(0, min(q + NR - 1, 29) - (q + 1))})')
                p(mf32(ya.sub(4 * t, 4), slots[q % NR], of.sub(4 * k, 4), 0 if k == 0 else ya.sub(4 * t, 4)))
                if q + NR < 30:
                    p(wread(q + NR))
                if k < 5:
                    if t == 1:
                        back, stub = p.uid('Lo'), p.uid('Los')
                        chk = check4(oc, of.sub(4 * k + 4, 4), stub)
                        redo = [oload(i) for i in range(k + 1, 6)] + [f's_waitcnt vmcnt({4 - k})'] + chk[:3]
                        stubs.append((stub, redo, back))
                        p(f's_waitcnt vmcnt({4 - k})\n{chk[0]}')
                    if t == 2:
                        p(chk[1])
                    if t == 3:
                        p(chk[2])
                    if t == 4:
                        p.label(back)
                        p(chk[3])
                elif t < 3 - o['k_early']:
                    p(kl[o['k_early'] + t])
        pr.count(14, sTo)
        V.free(of, oc, wr)
        yb = V.get(10, 2)
        for t in range(5):
            p(cvt2(yb.sub(2 * t, 2), ya.sub(4 * t, 4)))
            if t == 1:
                p(f'ds_write_b128 {vRW}, {yb.sub(0, 4)}')
            if t == 3:
                p(f'ds_write_b128 {vRW}, {yb.sub(4, 4)} offset:4096')
        p(f'ds_write_b64 {vRW2}, {yb.sub(8, 2)} offset:8192')
        p(f's_add_u32 {t0}, {sY}, {bYW}\ns_add_u32 {t1}, {sY}, {bYW2}\ns_add_u32 {t2}, {t0}, {YD}\ns_add_u32 {t3}, {t1}, {YD}')
        p('s_waitcnt lgkmcnt(0)\ns_barrier')
        V.free(ya, yb)
        pr.stamp(7)
        rf = V.get(16, 2)
        ra = V.get(8, 2)
        yc = V.get(4, 2)
        nr = 4 if w == 3 else 2
        p(f'ds_read_b128 {rf.sub(0, 4)}, {vRR} offset:{RX}\nds_read_b128 {rf.sub(4, 4)}, {vRR} offset:{RX + 1024}')
        if w == 3:
            p(f'ds_read_b128 {rf.sub(8, 4)}, {vHi} offset:{RX + 8192}\nds_read_b128 {rf.sub(12, 4)}, {vHi} offset:{RX + 9216}')
        for i in range(nr):
            a = ra.sub(4 * (i >> 1), 4)
            p(f's_waitcnt lgkmcnt({nr - 1 - i})')
            p(mf32(a, selh if i & 1 else sel, rf.sub(4 * i, 4), a if i & 1 else 0))
        p(cvt2(yc.sub(0, 2), ra.sub(0, 4)))
        p(f'buffer_store_dwordx2 {yc.sub(0, 2)}, {vYW}, {ws}, {t0} offen sc1')
        if w == 3:
            p(cvt2(yc.sub(2, 2), ra.sub(4, 4)))
            p(f'buffer_store_dwordx2 {yc.sub(2, 2)}, {vYW}, {ws}, {t1} offen sc1')
            p(f'buffer_store_dwordx2 {yc.sub(2, 2)}, {vYW}, {ws}, {t3} offen{loc}')
        p(f'buffer_store_dwordx2 {yc.sub(0, 2)}, {vYW}, {ws}, {t2} offen{loc}')
        V.free(rf, ra, yc)
        pr.stamp(8)
        if w == 3 and not o['nopub']:
            kq = V.get(12, 2)
            vq = V.get(12, 2)
            for i in range(3):
                p(f'ds_read_b128 {kq.sub(4 * i, 4)}, {vHi} offset:{QKX + 3072 + 1024 * i}')
            for i in range(6):
                if i != 3:
                    p(f'ds_read_b64 {vq.sub(2 * i, 2)}, {vVP} offset:{512 * i}')
            p(f's_add_u32 {t0}, {sKM}, {bKM}\ns_add_u32 {t1}, {t0}, {L.VM - L.KM}\ns_waitcnt lgkmcnt(0)')
            for i in range(3):
                p(f'buffer_store_dwordx4 {kq.sub(4 * i, 4)}, {vL16}, {ws}, {t0} offen offset:{1024 * i} sc1')
            for i in range(6):
                p(f'buffer_store_dwordx2 {vq.sub(2 * i, 2) if i != 3 else vm.sub(0, 2)}, {vL8}, {ws}, {t1} offen offset:{512 * i} sc1')
            V.free(kq, vq)
        p(f's_add_u32 {t2}, {sY}, {bYR}\ns_add_u32 {t3}, {sY}, {bYR2}')
        p(slot_offsets(1))
        if w < 3:
            nored = p.uid('Lnr')
            if w == 2:
                p(f's_cmp_eq_u32 {sRed}, 0\ns_cbranch_scc1 {nored}')
            if o['ydelay']:
                p(f's_sleep {o["ydelay"]}')
            y = V.get(8, 2)
            ra = V.get(4, 2)
            x0 = V.get(2, 2)
            lj, ljs = p.uid('Lj'), p.uid('Ljs')
            yl = [f'buffer_load_dwordx4 {y.sub(4 * i, 4)}, {vL16}, {ws}, {t3 if i else t2} offen sc1' for i in range(2)]
            p(f's_mov_b32 {sTo}, 0\n' + '\n'.join(yl))
            p.label(lj)
            for i in range(2):
                p(f's_waitcnt vmcnt({1 - i})')
                p(mf32(ra, sel, y.sub(4 * i, 4), 0 if i == 0 else ra))
            maxchain(p, x0[0], y)
            p(f'v_cmp_eq_u32 vcc, -1, {x0[0]}\ns_cbranch_vccnz {ljs}')
            stubs.append((ljs, ([f's_sleep {o["yretry"]}'] if o['yretry'] else []) + yl, lj))
            p(cvt2(x0, ra))
            ov, nov = p.uid('Lov'), p.uid('Lnov')
            p(f's_mov_b64 exec, 0xffffffff\ns_cmp_eq_u32 {sT}, {DELTA - 1}\ns_cbranch_scc1 {ov}')
            p.label(nov)
            stubs.append((ov, f"""s_mov_b32 exec_lo, 0xff00ff00
                v_mov_b32 {x0[0]}, {m0r[0]}
                v_mov_b32 {x0[1]}, {m0r[1]}
                s_mov_b32 exec_lo, -1""".split('\n'), nov))
            p(f"""
            buffer_store_dwordx2 {x0}, {vZW}, {ws}, {sZw} offen{loc}
            buffer_store_dwordx2 {ones.sub(0, 2)}, {vZW}, {ws}, {sZr} offen{loc}
            s_mov_b64 exec, -1
            """)
            pr.count(15, sTo)
            V.free(y, ra, x0)
            p.label(nored)
        pr.stamp(9)
        p(f's_add_u32 {sT}, {sT}, 1\ns_cmp_lt_u32 {sT}, {NSTEP}\ns_barrier')
        pr_done = p.uid('Ldone')
        if prof:
            p(f's_cbranch_scc0 {pr_done}')
            pr.stamp(10)
            if o['trace']:
                p(f's_memrealtime {pr.t}\ns_waitcnt lgkmcnt(0)\nv_writelane_b32 {pr.trace}, {pr.t[0]}, 11')
                p(f'buffer_store_dword {pr.trace}, {vTr}, {ws}, {sTr} offen\ns_add_u32 {sTr}, {sTr}, 256')
            p(f's_branch {top}')
            p.label(pr_done)
        else:
            p(f's_cbranch_scc1 {top}')
        x0, x1 = V.get(1), V.get(1)
        p('s_waitcnt vmcnt(0)\ns_barrier')
        if w == 0:
            p(f's_mov_b64 exec, 1\nv_mov_b32 {x0}, {sT}\nbuffer_store_dword {x0}, off, {ws}, {bF} sc1\ns_mov_b64 exec, -1')
        if prof:
            p(f's_lshl_b32 {t0}, {sC}, 2\ns_add_u32 {t0}, {t0}, {sW}\ns_lshl_b32 {t0}, {t0}, 8\ns_add_u32 {t0}, {t0}, {L.PROF}')
            p(f's_memtime {pr.t}\ns_waitcnt lgkmcnt(0)\ns_sub_u32 {pr.acc[16]}, {pr.t[0]}, {C.tstart[0]}')
            p(f's_memrealtime {pr.t}\ns_waitcnt lgkmcnt(0)\ns_sub_u32 {pr.acc[17]}, {pr.t[0]}, {C.rstart[0]}')
            pr.dump(ws, x0, x1, t0)
        p('s_endpgm')
        V.free(x0, x1)
        for stub, code, back in stubs:
            p.label(stub)
            p('\n'.join(code))
            timeout()
            p(f's_branch {back}')

    per_wave(lambda w: step_loop(w, True), join=False)
    p.label('L_rec_remote')
    per_wave(lambda w: step_loop(w, False), join=False)
    return V.high, A.high
```

```python
from common import *
import layout as L
from rec import cvt2, TIMEOUT
from gemm import srd_from


def half_sum(p, x, y):
    for n in (8, 4, 2, 1):
        p(f'v_add_f32_dpp {x}, {x}, {x} row_ror:{n} row_mask:0xf bank_mask:0xf')
    p(f'v_mov_b32 {y}, {x}\nv_permlane16_swap_b32 {x}, {y}\nv_add_f32 {x}, {x}, {y}')


def layer_norm(p, X, D, out, a, b, sInv):
    p(f'v_add_f32 {a}, {X[0]}, {X[1]}\nv_add_f32 {b}, {X[2]}, {X[3]}')
    for i in range(4, 20, 2):
        p(f'v_add_f32 {a}, {a}, {X[i]}\nv_add_f32 {b}, {b}, {X[i + 1]}')
    p(f'v_add_f32 {a}, {a}, {b}')
    half_sum(p, a, b)
    p(f'v_mul_f32 {a}, {sInv}, {a}')
    for i in range(20):
        p(f'v_sub_f32 {D[i]}, {X[i]}, {a}')
    p(f'v_mul_f32 {a}, {D[0]}, {D[0]}\nv_mul_f32 {b}, {D[1]}, {D[1]}')
    for i in range(2, 20, 2):
        p(f'v_fmac_f32 {a}, {D[i]}, {D[i]}\nv_fmac_f32 {b}, {D[i + 1]}, {D[i + 1]}')
    p(f'v_add_f32 {a}, {a}, {b}')
    half_sum(p, a, b)
    p(f'v_mov_b32 {b}, 0x3727c5ac\nv_fma_f32 {a}, {a}, {sInv}, {b}\nv_rsq_f32 {a}, {a}')
    for i in range(20):
        p(f'v_mul_f32 {D[i]}, {D[i]}, {a}')
    for i in range(10):
        p(f'v_cvt_pk_bf16_f32 {out[i]}, {D[2 * i]}, {D[2 * i + 1]}')


INV640 = 0x3acccccd


def gen_r(p, C, verify, kind):
    S = C.S
    V = Alloc('v', 1, 256)
    ws, sW = C.srd_ws, C.sW
    verify()
    t = [S.get(1) for _ in range(5)]
    sTo, sN0, sN1, sL, sS, sId, sInv = (S.get(1) for _ in range(7))
    out, ptr = S.get(4), S.get(2)
    vLane, v4, v2, vP, vF, vFa, vThr, a, b = (V.get(1) for _ in range(9))
    X, D, E, ob = V.get(20, 2), V.get(20, 2), V.get(20, 2), V.get(10, 2)
    nprod = 20 if kind == 1 else 5
    p(f'''
    s_load_dwordx2 {ptr}, {C.karg}, 88
    v_and_b32 {vLane}, 63, v0
    s_lshl_b32 {sId}, {C.sRole}, 2
    s_add_u32 {sId}, {sId}, {sW}
    s_mov_b32 {sInv}, {INV640:#x}
    v_lshrrev_b32 {a}, 5, {vLane}
    v_and_b32 {b}, 31, {vLane}
    v_min_u32 {vFa}, {nprod - 1}, {b}
    v_lshl_add_u32 {vFa}, {a}, 6, {vFa}
    v_lshlrev_b32 {vFa}, 2, {vFa}
    v_add_u32 {vFa}, {L.F_O if kind == 1 else L.F_D}, {vFa}
    ''')
    if kind == 1:
        p(f'''
        s_mul_i32 {t[0]}, {sId}, 2560
        v_lshl_add_u32 {v4}, {b}, 4, {t[0]}
        v_mul_u32_u24 {vP}, {2 * L.SEG_X4}, {a}
        v_add_u32 {vP}, {vP}, {v4}
        ''')
    else:
        p(f'''
        s_mul_i32 {t[0]}, {sId}, 5120
        v_mul_u32_u24 {v4}, 2560, {a}
        v_lshl_add_u32 {v4}, {b}, 4, {v4}
        v_add_u32 {v4}, {t[0]}, {v4}
        ''')
    p(f'v_lshrrev_b32 {v2}, 1, {v4}\ns_mov_b32 {sN0}, 0\ns_mov_b32 {sN1}, 0\ns_waitcnt lgkmcnt(0)')
    srd_from(p, out, ptr, 2048 * 1280)
    top, spin, go, try1 = p.uid('Lr'), p.uid('Lrs'), p.uid('Lrg'), p.uid('Lr1')
    p.label(top)
    p(f'''
    s_add_u32 {t[0]}, {sN0}, {sN1}
    s_cmp_ge_u32 {t[0]}, {2 * L.NSEG}
    s_cbranch_scc1 L_exit
    v_mov_b32 {vThr}, {sN0}
    s_mov_b32 exec_lo, 0
    v_mov_b32 {vThr}, {sN1}
    s_mov_b32 exec_lo, -1
    s_mov_b32 {sTo}, 0
    {spin}:
    s_add_u32 {sTo}, {sTo}, 1
    s_cmp_gt_u32 {sTo}, {TIMEOUT}
    s_cbranch_scc1 {C.fail}
    buffer_load_dword {vF}, {vFa}, {ws}, 0 offen sc1
    s_waitcnt vmcnt(0)
    v_cmp_lt_u32 vcc, {vThr}, {vF}
    s_cmp_eq_u32 vcc_lo, -1
    s_cbranch_scc0 {try1}
    s_mov_b32 {sL}, 0
    s_mov_b32 {sS}, {sN0}
    s_add_u32 {sN0}, {sN0}, 1
    s_branch {go}
    {try1}:
    s_cmp_eq_u32 vcc_hi, -1
    s_cbranch_scc0 {spin}
    s_mov_b32 {sL}, 1
    s_mov_b32 {sS}, {sN1}
    s_add_u32 {sN1}, {sN1}, 1
    {go}:
    s_mul_i32 {t[0]}, {sS}, {L.SEG_X4}
    ''')

    def ld(dst, va, so):
        for c in range(5):
            p(f'buffer_load_dwordx4 {dst.sub(4 * c, 4)}, {va}, {ws}, {so} offen offset:{512 * c} sc1')

    def st4(src, so):
        for c in range(5):
            p(f'buffer_store_dwordx4 {src.sub(4 * c, 4)}, {v4}, {ws}, {so} offen offset:{512 * c} sc1')

    def st2(src, srd, so, sc):
        for c in range(5):
            p(f'buffer_store_dwordx2 {src.sub(2 * c, 2)}, {v2}, {srd}, {so} offen offset:{256 * c}{sc}')

    if kind == 1:
        p(f'''
        s_mul_i32 {t[1]}, {sS}, {L.SEG_PO}
        s_add_u32 {t[1]}, {t[1]}, {L.PO}
        s_add_u32 {t[2]}, {t[1]}, {L.SEG_X4}
        s_mul_i32 {t[3]}, {sL}, {L.XR[1] - L.XR[0]}
        s_add_u32 {t[3]}, {t[3]}, {t[0]}
        s_add_u32 {t[3]}, {t[3]}, {L.XR[0]}
        ''')
        ld(D, vP, t[1])
        ld(E, vP, t[2])
        ld(X, v4, t[3])
        p('s_waitcnt vmcnt(5)')
        for i in range(20):
            p(f'v_add_f32 {D[i]}, {D[i]}, {E[i]}')
        for i in range(20):
            p(f'v_mov_b32 {E[i]}, {D[i]}')
        for i in range(20):
            p(f'v_permlane32_swap_b32 {D[i]}, {E[i]}')
        p('s_waitcnt vmcnt(0)')
        for i in range(20):
            p(f'v_add_f32 {D[i]}, {D[i]}, {E[i]}')
        for i in range(20):
            p(f'v_add_f32 {X[i]}, {X[i]}, {D[i]}')
        layer_norm(p, X, D, ob, a, b, sInv)
        p(f's_lshr_b32 {t[1]}, {t[0]}, 1\ns_add_u32 {t[1]}, {t[1]}, {L.XAN}\ns_add_u32 {t[2]}, {t[0]}, {L.XA}\ns_mov_b32 exec_hi, 0')
        st2(ob, ws, t[1], ' sc1')
        st4(X, t[2])
        p('s_mov_b32 exec_hi, -1')
    else:
        p(f's_add_u32 {t[1]}, {t[0]}, {L.PD}\ns_add_u32 {t[2]}, {t[0]}, {L.XA}')
        ld(D, v4, t[1])
        ld(X, v4, t[2])
        p('s_waitcnt vmcnt(0)')
        for i in range(20):
            p(f'v_add_f32 {X[i]}, {X[i]}, {D[i]}')
        last, join = p.uid('Lrl'), p.uid('Lrj')
        p(f's_lshr_b32 {t[1]}, {t[0]}, 1\ns_cmp_eq_u32 {sL}, 1\ns_cbranch_scc1 {last}')
        layer_norm(p, X, D, ob, a, b, sInv)
        p(f's_add_u32 {t[1]}, {t[1]}, {L.XN[1]}\ns_add_u32 {t[2]}, {t[0]}, {L.XR[1]}')
        st2(ob, ws, t[1], ' sc1')
        st4(X, t[2])
        p(f's_branch {join}')
        p.label(last)
        for i in range(10):
            p(f'v_cvt_pk_bf16_f32 {ob[i]}, {X[2 * i]}, {X[2 * i + 1]}')
        st2(ob, out, t[1], '')
        p.label(join)
    p(f'''
    s_lshl_b32 {t[0]}, {sL}, 6
    s_add_u32 {t[0]}, {t[0]}, {sId}
    s_lshl_b32 {t[0]}, {t[0]}, 2
    s_add_u32 {t[0]}, {t[0]}, {L.F_R1 if kind == 1 else L.F_R2}
    s_add_u32 {t[1]}, {sS}, 1
    s_waitcnt vmcnt(0)
    s_mov_b64 exec, 1
    v_mov_b32 {vF}, {t[1]}
    buffer_store_dword {vF}, off, {ws}, {t[0]} sc1
    s_mov_b64 exec, -1
    s_branch {top}
    ''')


def gen_prologue():
    p = Prog()
    V = Alloc('v', 1, 128)
    v4, v2, a, b = (V.get(1) for _ in range(4))
    X, D, ob, c4 = V.get(20, 2), V.get(20, 2), V.get(10, 2), V.get(4, 2)
    assert L.XB == L.FLAGS + L.FLAGS_BYTES and 256 * 12288 >= L.SENT_END - L.XB
    p(f'''
    s_cmp_ge_u32 s2, 256
    s_cbranch_scc1 L_pro_exit
    s_load_dwordx2 s[4:5], s[0:1], 0
    s_load_dwordx2 s[8:9], s[0:1], 104
    v_lshrrev_b32 {a}, 5, v0
    s_lshl_b32 s20, s2, 3
    v_add_u32 {a}, s20, {a}
    v_mul_u32_u24 {v2}, 1280, {a}
    v_and_b32 {b}, 31, v0
    v_lshl_add_u32 {v2}, {b}, 3, {v2}
    v_lshlrev_b32 {v4}, 1, {v2}
    s_mov_b32 s21, {INV640:#x}
    s_waitcnt lgkmcnt(0)
    s_mov_b32 s6, {2048 * 1280}
    s_mov_b32 s7, 0x20000
    s_mov_b32 s10, 0x10000000
    s_mov_b32 s11, 0x20000
    s_mov_b32 s12, s8
    s_mov_b32 s13, s9
    s_mov_b32 s14, {L.SENT_END}
    s_mov_b32 s15, 0x20000
    ''')
    for c in range(5):
        p(f'buffer_load_dwordx2 {ob.sub(2 * c, 2)}, {v2}, s[4:7], 0 offen offset:{256 * c}')
    for r in range(4):
        p(f'v_mov_b32 {c4[r]}, -1')
    p(f'v_lshlrev_b32 {a}, 4, v0\ns_mul_i32 s20, s2, 12288\ns_add_u32 s20, s20, {L.XB}')
    for i in range(3):
        p(f'buffer_store_dwordx4 {c4}, {a}, s[12:15], s20 offen\ns_add_u32 s20, s20, 4096')
    p('s_cmp_ge_u32 s2, 4\ns_cbranch_scc1 L_pro_nf')
    for r in range(4):
        p(f'v_mov_b32 {D[r]}, 0')
    p(f's_lshl_b32 s20, s2, 12\ns_add_u32 s20, s20, {L.FLAGS}\nbuffer_store_dwordx4 {D.sub(0, 4)}, {a}, s[12:15], s20 offen')
    p.label('L_pro_nf')
    p('s_waitcnt vmcnt(0)')
    for i in range(10):
        p(f'v_lshlrev_b32 {X[2 * i]}, 16, {ob[i]}\nv_and_b32 {X[2 * i + 1]}, 0xffff0000, {ob[i]}')
    p(f's_mov_b32 s20, {L.XR[0]}\ns_mov_b32 s22, {L.XN[0]}')
    for c in range(5):
        p(f'buffer_store_dwordx4 {X.sub(4 * c, 4)}, {v4}, s[8:11], s20 offen offset:{512 * c}')
    layer_norm(p, X, D, ob, a, b, 's21')
    for c in range(5):
        p(f'buffer_store_dwordx2 {ob.sub(2 * c, 2)}, {v2}, s[8:11], s22 offen offset:{256 * c}')
    p.label('L_pro_exit')
    p('s_endpgm')
    return p, V.high + 1
```

```python
import build, sys, json
from common import NAME
cfg = json.load(open('final_cfg.json'))
o = dict(build.DEF); o.update(cfg.pop('opt', {}))
build.build('out/final.s', opt=o, **cfg)
ref = open('/code/' + NAME + '.s.ref').read().split('\n')
hdr = [l for l in ref if l.startswith(';') and '@launch' not in l and 'Override launch' not in l and 'grid=ceil' not in l]
hdr += ['; Generated by gen/make_final.py (hand-written generator, see gen/*.py).',
        '; pro_kernel: clears the hand-off flags, marks the mail boxes empty, first layer norm.',
        '; main_kernel: one persistent workgroup per CU, role by ticket (see gen/main.py).']
open('/code/' + NAME + '.s', 'w').write('\n'.join(hdr) + '\n' + open('out/final.s').read())
```

```python
import struct
from common import *
import layout as L
from rec import mf32, mf16, cvt2, TIMEOUT


def gen_at(p, C, verify, DELTA, only0=False):
    S = C.S
    V = Alloc('v', 1, 256)
    ws, sW, sH = C.srd_ws, C.sW, S.get(1)
    verify()
    t = [S.get(1) for _ in range(5)]
    sTo, sL, sS, sS1, sT1, sFlag, sCexp = (S.get(1) for _ in range(7))
    bQ, bK, bV, bO, bM = (S.get(1) for _ in range(5))
    vLane, vL16, vF, vFa, vFb, x, y = (V.get(1) for _ in range(7))
    bd, bm, one16 = V.get(4, 2), V.get(4, 2), V.get(4, 2)
    cbits = struct.unpack('<I', struct.pack('<f', (192 ** -0.5) * 1.4426950408889634))[0]
    p(f'''
    v_and_b32 {vLane}, 63, v0
    v_lshlrev_b32 {vL16}, 4, {vLane}
    s_mov_b32 {sCexp}, {cbits:#x}
    s_lshr_b32 {sL}, {C.sRole}, 4
    s_and_b32 {sH}, {C.sRole}, 15
    s_lshl_b32 {sH}, {sH}, 1
    s_lshr_b32 {t[0]}, {sW}, 1
    s_add_u32 {sH}, {sH}, {t[0]}
    s_and_b32 {t[0]}, {sW}, 1
    s_mul_i32 {t[1]}, {sH}, 12288
    s_lshl_b32 {t[2]}, {t[0]}, 10
    s_add_u32 {t[2]}, {t[2]}, {t[1]}
    s_add_u32 {bQ}, {t[2]}, {L.QF}
    s_add_u32 {bO}, {t[2]}, {L.OF}
    s_mul_i32 {t[3]}, {sL}, {L.KF[1] - L.KF[0]}
    s_add_u32 {t[3]}, {t[3]}, {t[1]}
    s_add_u32 {bK}, {t[3]}, {L.KF[0]}
    s_add_u32 {bV}, {t[3]}, {L.VF[0]}
    s_mul_i32 {bM}, {sH}, 6144
    s_mul_i32 {t[3]}, {sL}, {DELTA * L.KM_STEP}
    s_add_u32 {bM}, {bM}, {t[3]}
    s_add_u32 {bM}, {bM}, {L.KM}
    s_lshl_b32 {sFlag}, {sL}, 6
    s_lshr_b32 {t[3]}, {sH}, 1
    s_add_u32 {sFlag}, {sFlag}, {t[3]}
    s_lshl_b32 {sFlag}, {sFlag}, {L.FS}
    s_add_u32 {sFlag}, {sFlag}, {L.F_AT}
    ; flags of the q/k/v producers: matrix (lane>>2)%3, wave 3h + min(lane&3, 2)
    v_and_b32 {vFa}, 3, {vLane}
    v_min_u32 {vFa}, 2, {vFa}
    v_bfe_u32 {x}, {vLane}, 2, 2
    v_min_u32 {x}, 2, {x}
    v_mul_u32_u24 {x}, 96, {x}
    v_add_u32 {vFa}, {vFa}, {x}
    s_mul_i32 {t[3]}, {sH}, 3
    s_lshl_b32 {t[4]}, {sL}, 9
    s_add_u32 {t[3]}, {t[3]}, {t[4]}
    v_add_u32 {vFa}, {t[3]}, {vFa}
    v_lshlrev_b32 {vFa}, {L.FS}, {vFa}
    v_add_u32 {vFa}, {L.F_QKV}, {vFa}
    v_and_b32 {vFb}, 1, {vLane}
    s_lshl_b32 {t[3]}, {sH}, 1
    v_add_u32 {vFb}, {t[3]}, {vFb}
    v_lshlrev_b32 {vFb}, {L.FS}, {vFb}
    v_add_u32 {vFb}, {L.F_REC}, {vFb}
    v_mov_b32 {y}, 0xf149f2ca
    v_lshrrev_b32 {x}, 5, {vLane}
    v_cmp_eq_u32 vcc, {sL}, {x}
    v_cndmask_b32 {bm[0]}, {y}, 0, vcc
    ''')
    assert L.VF[1] - L.VF[0] == L.KF[1] - L.KF[0]
    for r in range(4):
        if r:
            p(f'v_mov_b32 {bm[r]}, {bm[0]}')
        p(f'''
        v_mov_b32 {one16[r]}, 0x3f803f80
        v_lshrrev_b32 {x}, 4, {vLane}
        v_lshlrev_b32 {x}, 2, {x}
        v_add_u32 {x}, {r}, {x}
        v_and_b32 {vF}, 15, {vLane}
        v_cmp_le_u32 vcc, {x}, {vF}
        v_cndmask_b32 {bd[r]}, {y}, 0, vcc
        ''')
    V.free(x, y, vLane)
    Q, K, Vv, KMr, VMr = V.get(24, 2), V.get(48, 2), V.get(48, 2), V.get(24, 2), V.get(24, 2)
    sc = V.get(12, 2)
    P, Pm, ls = V.get(4, 2), V.get(2, 2), V.get(4, 2)
    mx, m2 = V.get(1), V.get(1)
    p(f'v_mov_b32 {P[2]}, 0\nv_mov_b32 {P[3]}, 0\ns_mov_b32 {sS}, 0')

    def wait(va, thr):
        lab = p.uid('Lw')
        p(f's_mov_b32 {sTo}, 0')
        p.label(lab)
        p(f'''
        s_add_u32 {sTo}, {sTo}, 1
        s_cmp_gt_u32 {sTo}, {TIMEOUT}
        s_cbranch_scc1 {C.fail}
        buffer_load_dword {vF}, {va}, {ws}, 0 offen sc1
        s_waitcnt vmcnt(0)
        v_cmp_le_u32 vcc, {thr}, {vF}
        s_cmp_eq_u64 vcc, -1
        s_cbranch_scc0 {lab}
        ''')

    def loads(dst, n, base, step, va=None, width=4):
        for i in range(n):
            o = i * step
            if o % 4096 < step:
                p(f's_add_u32 {t[4]}, {base}, {o - o % 4096}')
            p(f'buffer_load_dwordx{width} {dst.sub(width * i, width)}, {va or vL16}, {ws}, {t[4]} offen offset:{o % 4096} sc1')

    mk = Marks(p, C, V, C.base)
    if only0:
        p(f's_cmp_eq_u32 {sL}, 1\ns_cbranch_scc1 L_exit')
    p(f's_bitcmp1_b32 {sW}, 0\ns_cbranch_scc1 L_at_1')
    for tau in range(2):
        if tau:
            p.label('L_at_1')
        top = p.uid('Lat')
        p.label(top)
        p(f's_add_u32 {sS1}, {sS}, 1\ns_mul_i32 {sT1}, {sL}, {DELTA}\ns_add_u32 {sT1}, {sT1}, {sS1}')
        wait(vFa, sS1)
        mk.mark(0)
        p(f's_mul_i32 {t[0]}, {sS}, {L.SEG_F}\ns_add_u32 {t[1]}, {t[0]}, {bQ}\ns_add_u32 {t[2]}, {t[0]}, {bK}\ns_add_u32 {t[3]}, {t[0]}, {bV}')
        loads(Q, 6, t[1], 2048)
        if tau:
            loads(K, 12, t[2], 1024)
        else:
            loads(K, 6, t[2], 2048)
        loads(Vv, 12, t[3], 1024)
        p('s_waitcnt vmcnt(12)')
        for i in range(6):
            if tau:
                p(mf32(sc.sub(0, 4), K.sub(8 * i, 4), Q.sub(4 * i, 4), 0 if i == 0 else sc.sub(0, 4)))
                p(mf32(sc.sub(4, 4), K.sub(8 * i + 4, 4), Q.sub(4 * i, 4), bd if i == 0 else sc.sub(4, 4)))
            else:
                p(mf32(sc.sub(0, 4), K.sub(4 * i, 4), Q.sub(4 * i, 4), bd if i == 0 else sc.sub(0, 4)))
        wait(vFb, sT1)
        mk.mark(1)
        p(f's_mul_i32 {t[1]}, {sS}, {L.KM_STEP}\ns_add_u32 {t[1]}, {t[1]}, {bM}\ns_add_u32 {t[2]}, {t[1]}, {L.VM - L.KM}')
        loads(KMr, 6, t[1], 1024)
        loads(VMr, 6, t[2], 1024)
        for i in range(6):
            p(f's_waitcnt vmcnt({11 - i})')
            p(mf32(sc.sub(8, 4), KMr.sub(4 * i, 4), Q.sub(4 * i, 4), bm if i == 0 else sc.sub(8, 4)))
        idx = list(range(12)) if tau else [0, 1, 2, 3, 8, 9, 10, 11]
        p(f'v_max3_f32 {mx}, {sc[0]}, {sc[1]}, {sc[2]}')
        if tau:
            p(f'v_max3_f32 {mx}, {mx}, {sc[4]}, {sc[5]}\nv_max3_f32 {mx}, {mx}, {sc[6]}, {sc[7]}')
        p(f'''
        v_max3_f32 {m2}, {sc[3]}, {sc[8]}, {sc[9]}
        v_max3_f32 {mx}, {mx}, {sc[10]}, {sc[11]}
        v_max_f32 {mx}, {mx}, {m2}
        v_mov_b32 {m2}, {mx}
        v_permlane32_swap_b32 {mx}, {m2}
        v_max_f32 {mx}, {mx}, {m2}
        v_mov_b32 {m2}, {mx}
        v_permlane16_swap_b32 {mx}, {m2}
        v_max_f32 {mx}, {mx}, {m2}
        v_mul_f32 {mx}, {sCexp}, {mx}
        ''')
        for r in idx:
            p(f'v_fma_f32 {sc[r]}, {sc[r]}, {sCexp}, -{mx}')
        for r in idx:
            p(f'v_exp_f32 {sc[r]}, {sc[r]}')
        p(cvt2(P.sub(0, 2), sc.sub(0, 4)))
        if tau:
            p(cvt2(P.sub(2, 2), sc.sub(4, 4)))
        p(cvt2(Pm, sc.sub(8, 4)))
        oa = K
        p(mf32(ls, one16, P, 0))
        for e in range(12):
            p(mf32(oa.sub(4 * e, 4), Vv.sub(4 * e, 4), P, 0))
            if e == 1:
                p(mf16(ls, one16.sub(0, 2), Pm, ls))
            if e == 5:
                p(f'v_rcp_f32 {m2}, {ls[0]}\ns_add_u32 {t[1]}, {t[0]}, {bO}\ns_waitcnt vmcnt(0)')
        for e in range(12):
            p(mf16(oa.sub(4 * e, 4), VMr.sub(2 * e, 2), Pm, oa.sub(4 * e, 4)))
            if e >= 5 and e % 2 == 1:
                pi = (e - 5) // 2
                fin(p, oa, Q, pi, m2, vL16, ws, t)
        for pi in range(4, 6):
            fin(p, oa, Q, pi, m2, vL16, ws, t)
        barrier_publish(p, C, vF, sS1, sFlag)
        mk.mark(2)
        mk.value(3, sS)
        mk.flush()
        p(f'''
        s_mov_b32 {sS}, {sS1}
        s_cmp_lt_u32 {sS}, {L.NSEG}
        s_cbranch_scc1 {top}
        s_endpgm
        ''')


def fin(p, oa, Q, pi, rinv, vL16, ws, t):
    a = oa.sub(8 * pi, 8)
    d = Q.sub(4 * pi, 4)
    for r in range(8):
        p(f'v_mul_f32 {a[r]}, {a[r]}, {rinv}')
    p(cvt2(d.sub(0, 2), a.sub(0, 4)))
    p(cvt2(d.sub(2, 2), a.sub(4, 4)))
    if pi % 2 == 0:
        p(f's_add_u32 {t[4]}, {t[1]}, {pi * 2048}')
    p(f'buffer_store_dwordx4 {d}, {vL16}, {ws}, {t[4]} offen offset:{(pi % 2) * 2048} sc1')
```

```python
import sys, json
from common import *
import main, rec, gemm, at, rr
import layout as L

HEADER = open('/code/' + NAME + '.s.ref').read() if False else ''

def _place(ra=0, rb=1):
    nxt = dict(qkv=64, o=136, at=176, gu=208, d=232, r=242)
    plan = [dict(qkv=12, o=10, gu=3, at=5, r=2), dict(qkv=12, o=10, gu=3, at=5, r=2), dict(qkv=12, o=5, d=5, gu=3, at=5, r=2),
            dict(qkv=12, o=5, d=5, gu=3, at=5, r=2), dict(qkv=12, o=5, gu=6, at=6, r=3), dict(qkv=12, o=5, gu=6, at=6, r=3)]
    out = []
    for d in plan:
        runs = []
        for k, n in d.items():
            runs.append((n, nxt[k])); nxt[k] += n
        out.append(runs)
    assert ra < rb
    out.insert(ra, [(32, 0)])
    out.insert(rb, [(32, 32)])
    return out
PLACE = _place()

def build(path, DELTA=9, LEAD=13, prof=False, remote=False, opt=None, quiet=False, btrace=False, spread=True, PUB=10, rx=(3, 4)):
    roles = [('rec', 64, lambda p, C, v: rec.gen_rec(p, C, DELTA, v, prof=prof, opt=opt)),
             ('qkv', 72, lambda p, C, v: gemm.gen_qkv(p, C, v, LEAD, PUB=PUB)),
             ('o', 40, lambda p, C, v: gemm.gen_od(p, C, v, 'o')),
             ('at', 32, lambda p, C, v: at.gen_at(p, C, v, DELTA)),
             ('gu', 24, lambda p, C, v: gemm.gen_gu(p, C, v)),
             ('d', 10, lambda p, C, v: gemm.gen_od(p, C, v, 'd')),
             ('r1', 8, lambda p, C, v: rr.gen_r(p, C, v, 1)),
             ('r2', 4, lambda p, C, v: rr.gen_r(p, C, v, 2))]
    p, ns = main.gen_main(DELTA, roles, prof=prof, force_remote=remote, btrace=btrace, place=_place(*rx) if spread else None)
    n = p.fix_hazards()
    errs = p.check_waits()
    q, nv = rr.gen_prologue()
    q.fix_hazards()
    errs += q.check_waits()
    if not quiet: print(path, 'nops', n, 'ins', p.count(), 'sgpr', ns)
    for e in errs[:8]: print('WAIT', e)
    txt = file_text([('pro_kernel', 256, 256, 0), ('main_kernel', 256, 256, 163840)],
                    [kernel_text('pro_kernel', q, (nv + 7) // 8 * 8, 32, (nv + 7) // 8 * 8), kernel_text('main_kernel', p, 512, 102, 256)])
    open(path, 'w').write(txt)

DEF = dict(ydelay=11, ogap=7, zgap=11, ysets=1, zdelay=2, wring=8, zprobe=False, oprobe=0, ksplit=False, pub='y', odelay=4, pubdelay=10)
if __name__ == '__main__':
    cfgs = json.load(open(sys.argv[1]))
    for k, v in cfgs.items():
        v = dict(v)
        if 'ext' in v:
            import shutil; shutil.copy('keep/' + v['ext'], f'out/{k}.s'); continue
        pf = v.pop('prof', False)
        v.pop('check', None)
        o = dict(DEF); o.update(v.pop('opt', {}))
        build(f'out/{k}.s', prof=(True if pf is True else (set(pf) if pf else False)), opt=o, **v)
```

```python
from asmlib import *
NAME = 'interleave_layers__memory_aug_recurrent_mem_tr__glu_gated_glu__prompt'

def kernel_text(label, prog, nv, ns, acc):
    body = f'.globl {label}\n.p2align 8\n.type {label},@function\n{label}:\n' + prog.text()
    desc = (f'.amdhsa_kernel {label}\n  .amdhsa_next_free_vgpr {nv}\n  .amdhsa_next_free_sgpr {ns}\n'
            f'  .amdhsa_accum_offset {acc}\n  .amdhsa_group_segment_fixed_size 0\n  .amdhsa_kernarg_size 112\n'
            '  .amdhsa_user_sgpr_count 2\n  .amdhsa_user_sgpr_kernarg_segment_ptr 1\n'
            '  .amdhsa_system_sgpr_workgroup_id_x 1\n  .amdhsa_float_denorm_mode_32 3\n.end_amdhsa_kernel\n')
    return body, desc

def file_text(launches, kernels, header=''):
    s = header
    for (l, g, b, lds) in launches:
        s += f'; @launch kernel={l} grid=({g},1,1) block=({b},1,1) lds={lds}\n'
    s += '.amdgcn_target "amdgcn-amd-amdhsa--gfx950"\n.text\n'
    for body, _ in kernels:
        s += body
    s += '.section .rodata,"a"\n'
    for _, desc in kernels:
        s += '.p2align 6\n' + desc
    return s


class Marks:
    def __init__(self, p, C, V, base):
        import layout as L
        self.p, self.C, self.on = p, C, getattr(C, 'btrace', False)
        if self.on:
            self.v, self.a = V.get(1), V.get(1)
            self.t, self.o = C.S.get(2), C.S.get(1)
            p(f'v_mbcnt_lo_u32_b32 {self.a}, -1, 0\nv_mbcnt_hi_u32_b32 {self.a}, -1, {self.a}\nv_lshlrev_b32 {self.a}, 2, {self.a}\nv_mov_b32 {self.v}, 0')
            p(f's_add_u32 {self.o}, {C.sRole}, {base}\ns_lshl_b32 {self.o}, {self.o}, 2\ns_add_u32 {self.o}, {self.o}, {C.sW}\ns_lshl_b32 {self.o}, {self.o}, 11\ns_add_u32 {self.o}, {self.o}, {L.BTRACE}')

    def mark(self, k):
        if self.on:
            self.p(f's_memrealtime {self.t}\ns_waitcnt lgkmcnt(0)\nv_writelane_b32 {self.v}, {self.t[0]}, {k}')

    def value(self, k, s):
        if self.on:
            self.p(f'v_writelane_b32 {self.v}, {s}, {k}')

    def flush(self):
        if self.on:
            self.p(f's_mov_b64 exec, 15\nbuffer_store_dword {self.v}, {self.a}, {self.C.srd_ws}, {self.o} offen\ns_mov_b64 exec, -1\ns_add_u32 {self.o}, {self.o}, 16')


def clock_dump(p, C, V):
    import layout as L
    if not hasattr(C, 'tstart'):
        return
    t, o = C.S.get(2), C.S.get(1)
    a = V.get(2, 2)
    p(f's_memtime {t}\ns_waitcnt lgkmcnt(0)\ns_sub_u32 {t[0]}, {t[0]}, {C.tstart[0]}\nv_mov_b32 {a[0]}, {t[0]}')
    p(f's_memrealtime {t}\ns_waitcnt lgkmcnt(0)\ns_sub_u32 {t[0]}, {t[0]}, {C.rstart[0]}\nv_mov_b32 {a[1]}, {t[0]}')
    p(f's_add_u32 {o}, {C.sRole}, {C.base}\ns_lshl_b32 {o}, {o}, 3\ns_add_u32 {o}, {o}, {L.PROF + (1 << 19)}')
    p(f's_mov_b64 exec, 1\nbuffer_store_dwordx2 {a}, off, {C.srd_ws}, {o}\ns_mov_b64 exec, -1')
    C.S.free(t, o)
    V.free(a)


CNT_LDS = 163840 - 64


class Arrive:
    def __init__(self, p, C, V, n, slot=None):
        self.p, self.C, self.n = p, C, n
        self.a, self.x = V.get(1), V.get(1)
        self.s = C.S.get(1)
        p(f'v_mov_b32 {self.a}, {CNT_LDS}')
        if slot is not None:
            p(f'v_lshl_add_u32 {self.a}, {slot}, 2, {self.a}')
        p(f'v_mov_b32 {self.x}, 0\nds_write_b32 {self.a}, {self.x}\ns_waitcnt lgkmcnt(0)\ns_barrier')

    def publish(self, sVal, sFlag):
        p, skip = self.p, self.p.uid('Lar')
        p(f"""
        s_mov_b64 exec, 1
        v_mov_b32 {self.x}, 1
        ds_add_rtn_u32 {self.x}, {self.a}, {self.x}
        s_waitcnt lgkmcnt(0)
        v_readfirstlane_b32 {self.s}, {self.x}
        s_and_b32 {self.s}, {self.s}, {self.n - 1}
        s_cmp_eq_u32 {self.s}, {self.n - 1}
        s_cbranch_scc0 {skip}
        v_mov_b32 {self.x}, {sVal}
        buffer_store_dword {self.x}, off, {self.C.srd_ws}, {sFlag} sc1
        {skip}:
        s_mov_b64 exec, -1
        """)


def barrier_publish(p, C, vx, sVal, sFlag):
    skip = p.uid('Lbp')
    p(f"""
    s_waitcnt vmcnt(0)
    s_barrier
    s_cmp_eq_u32 {C.sW}, 0
    s_cbranch_scc0 {skip}
    s_mov_b64 exec, 1
    v_mov_b32 {vx}, {sVal}
    buffer_store_dword {vx}, off, {C.srd_ws}, {sFlag} sc1
    s_mov_b64 exec, -1
    {skip}:
    """)
```

```python
import struct
from common import *
import layout as L
from rec import mf32, cvt2, TIMEOUT, Prof

STG = 20480


class G:
    def __init__(self, p, C, nk, nt):
        self.p, self.C, self.nk, self.nt = p, C, nk, nt
        self.S = C.S
        self.V = Alloc('v', 1, 256)
        self.A = Alloc('a', 0, 256)
        self.t = [self.S.get(1) for _ in range(5)]
        self.sTo = self.S.get(1)
        self.W = [[self.wfrag() for k in range(nk)] for i in range(nt)]
        self.vLane, self.vL16 = self.V.get(1), self.V.get(1)
        p(f'v_and_b32 {self.vLane}, 63, v0\nv_lshlrev_b32 {self.vL16}, 4, {self.vLane}')

    def wfrag(self):
        try:
            return self.A.get(4, 4)
        except RuntimeError:
            return self.V.get(4, 4)

    def timeout(self):
        self.p(f's_add_u32 {self.sTo}, {self.sTo}, 1\ns_cmp_gt_u32 {self.sTo}, {TIMEOUT}\ns_cbranch_scc1 {self.C.fail}')

    def load_weights(self, srcs, pitch, kc, rowmap, pair_cols=False):
        p, V, t, sW = self.p, self.V, self.t, self.C.sW
        rows = 32 * kc
        vo, vtr = [], []
        x = V.get(1)
        base = 0
        plan = []
        for (srd, so, rb, tiles) in srcs:
            cpr = rb // 16
            sh = cpr.bit_length() - 1
            a, b = V.get(1), V.get(1)
            p(f'''
            v_lshrrev_b32 {a}, {sh}, {self.vLane}
            v_mul_u32_u24 {a}, {pitch}, {a}
            v_and_b32 {x}, {cpr - 1}, {self.vLane}
            v_lshl_add_u32 {a}, {x}, 4, {a}
            v_lshrrev_b32 {b}, 4, {self.vLane}
            v_lshlrev_b32 {b}, {3 if rowmap == 'nat' else 2}, {b}
            v_bfe_u32 {x}, {self.vLane}, 2, 2
            v_add_u32 {b}, {b}, {x}
            v_mul_u32_u24 {b}, {rb}, {b}
            v_and_b32 {x}, 3, {self.vLane}
            v_lshl_add_u32 {b}, {x}, {4 if pair_cols else 3}, {b}
            s_mul_i32 {t[0]}, {sW}, {2 * STG}
            s_add_u32 {t[0]}, {t[0]}, {base}
            v_add_u32 {b}, {t[0]}, {b}
            ''')
            plan.append((srd, so, rb, tiles, a, b, base, 64 // cpr))
            base += rows * rb
        assert base <= STG
        V.free(x)
        nch = -(-self.nk // kc)

        def ninstr(c):
            r = 32 * min(kc, self.nk - c * kc)
            return sum(r // q[7] for q in plan)

        def issue(c):
            r = 32 * min(kc, self.nk - c * kc)
            p(f's_mul_i32 {t[0]}, {sW}, {2 * STG}')
            for (srd, so, rb, tiles, a, b, base, rpi) in plan:
                for i in range(r // rpi):
                    p(f's_add_u32 m0, {t[0]}, {(c & 1) * STG + base + i * 1024}')
                    p(f's_add_u32 {t[1]}, {so}, {(c * rows + i * rpi) * pitch}')
                    p(f'buffer_load_dwordx4 {a}, {srd}, {t[1]} offen lds')

        issue(0)
        for c in range(nch):
            if c + 1 < nch:
                issue(c + 1)
                p(f's_waitcnt vmcnt({ninstr(c + 1)})')
            else:
                p('s_waitcnt vmcnt(0)')
            for kl in range(min(kc, self.nk - c * kc)):
                for (srd, so, rb, tiles, a, b, base, rpi) in plan:
                    for j, ti in enumerate(tiles):
                        for hf in range(2):
                            row = 32 * kl + (4 if rowmap == 'nat' else 16) * hf
                            p(f'ds_read_b64_tr_b16 {self.W[ti][c * kc + kl].sub(2 * hf, 2)}, {b} offset:{(c & 1) * STG + row * rb + (8 if pair_cols else 32) * j}')
            p('s_waitcnt lgkmcnt(0)')
        for q in plan:
            V.free(q[4], q[5])
        p('s_barrier')

    def wait_flags(self, vF, vFa, thr, have=False, ok=None):
        p = self.p
        lab = p.uid('Lw')
        p(f's_mov_b32 {self.sTo}, 0')
        p.label(lab)
        self.timeout()
        p(f'''
        buffer_load_dword {vF}, {vFa}, {self.C.srd_ws}, 0 offen sc1
        s_waitcnt vmcnt(0)
        v_cmp_le_u32 vcc, {thr}, {vF}
        s_cmp_eq_u64 vcc, -1
        s_cbranch_scc0 {lab}
        ''')

    def rows_setup(self):
        p, V, t, sW = self.p, self.V, self.t, self.C.sW
        self.vD = V.get(1)
        self.vR = [V.get(1), V.get(1)]
        x, y = V.get(1), V.get(1)
        p(f'''
        v_lshrrev_b32 {x}, 3, {self.vLane}
        s_lshl_b32 {t[0]}, {sW}, 3
        v_add_u32 {x}, {t[0]}, {x}
        v_bfe_u32 {y}, {x}, 1, 3
        v_mul_u32_u24 {x}, 1280, {x}
        v_and_b32 {self.vD}, 7, {self.vLane}
        v_xor_b32 {self.vD}, {self.vD}, {y}
        v_lshl_add_u32 {self.vD}, {self.vD}, 4, {x}
        v_and_b32 {x}, 15, {self.vLane}
        v_bfe_u32 {y}, {self.vLane}, 1, 3
        v_lshrrev_b32 {self.vR[0]}, 4, {self.vLane}
        v_add_u32 {self.vR[1]}, 4, {self.vR[0]}
        v_xor_b32 {self.vR[0]}, {self.vR[0]}, {y}
        v_xor_b32 {self.vR[1]}, {self.vR[1]}, {y}
        v_lshlrev_b32 {x}, 7, {x}
        v_lshl_add_u32 {self.vR[0]}, {self.vR[0]}, 4, {x}
        v_lshl_add_u32 {self.vR[1]}, {self.vR[1]}, 4, {x}
        ''')
        V.free(x, y)

    def rows_dma(self, kb, sM, sA):
        return f's_add_u32 m0, {sM}, {kb * (4096 - 128)}\nbuffer_load_dwordx4 {self.vD}, {self.C.srd_ws}, {sA} offen offset:{kb * 128} sc1 lds'

    def rows_read(self, dst, k, tau, vR=None):
        vR = vR or self.vR
        return f'ds_read_b128 {dst}, {vR[k & 1]} offset:{(k >> 1) * 4096 + tau * 2048}'

    def stepper(self, acc, ring, read, swap, starts, wait_chunk):
        p, nk, nt = self.p, self.nk, self.nt
        PD = 2
        R = PD + 1
        starts = list(starts) + [nk]

        def rd(k):
            if k in starts:
                wait_chunk(k, starts[starts.index(k) + 1])
            for tau in range(2):
                p(read(ring.sub(8 * (k % R) + 4 * tau, 4), k, tau))

        def head():
            for k in range(PD):
                rd(k)

        def step(k, fs=()):
            fs = list(fs)
            if k + PD < nk:
                rd(k + PD)
            left = 2 * nt
            for tau in range(2):
                if tau == 0 or k == 0 or k + PD >= nk:
                    p(f's_waitcnt lgkmcnt({2 * min(PD, nk - 1 - k) + (1 - tau if (k == 0 or k + PD >= nk) else 0)})')
                b = ring.sub(8 * (k % R) + 4 * tau, 4)
                for i in range(nt):
                    a = acc[i][tau]
                    p(mf32(a, b, self.W[i][k], 0 if k == 0 else a) if swap else mf32(a, self.W[i][k], b, 0 if k == 0 else a))
                    for _ in range(-(-len(fs) // left)):
                        f = fs.pop(0)
                        f() if callable(f) else p(f)
                    left -= 1
        return head, step

    def stream(self, acc, ring, read, swap, starts, wait_chunk, fill=None):
        head, step = self.stepper(acc, ring, read, swap, starts, wait_chunk)
        head()
        for k in range(self.nk):
            step(k, (fill or {}).get(k, ()))


def srd_from(p, srd, ptr, nbytes):
    p(f's_mov_b32 {srd[0]}, {ptr[0]}\ns_mov_b32 {srd[1]}, {ptr[1]}\ns_mov_b32 {srd[2]}, {nbytes}\ns_mov_b32 {srd[3]}, 0x20000')


def gen_qkv(p, C, verify, LEAD, only=None, PUB=10):
    g = G(p, C, 20, 4)
    S, V, t, ws, sW, sC = g.S, g.V, g.t, C.srd_ws, C.sW, C.sRole
    srd, ptr = S.get(4), S.get(8, 4)
    sM, sCol = S.get(1), S.get(1)
    p(f'''
    s_load_dwordx4 {ptr[0:4]}, {C.karg}, 16
    s_load_dwordx2 {ptr[4:6]}, {C.karg}, 32
    s_cmp_ge_u32 {sC}, 24
    s_cselect_b32 {sM}, 1, 0
    s_cmp_ge_u32 {sC}, 48
    s_cselect_b32 {sM}, 2, {sM}
    s_mul_i32 {t[0]}, {sM}, 24
    s_sub_u32 {sCol}, {sC}, {t[0]}
    s_lshl_b32 {sCol}, {sCol}, 2
    s_add_u32 {sCol}, {sCol}, {sW}
    s_waitcnt lgkmcnt(0)
    s_cmp_eq_u32 {sM}, 1
    s_cselect_b32 {ptr[0]}, {ptr[2]}, {ptr[0]}
    s_cselect_b32 {ptr[1]}, {ptr[3]}, {ptr[1]}
    s_cmp_eq_u32 {sM}, 2
    s_cselect_b32 {ptr[0]}, {ptr[4]}, {ptr[0]}
    s_cselect_b32 {ptr[1]}, {ptr[5]}, {ptr[1]}
    s_lshl_b32 {t[4]}, {sCol}, 7
    ''')
    srd_from(p, srd, ptr, 640 * 12288)
    g.load_weights([(srd, t[4], 128, [0, 1, 2, 3])], 12288, 5, 'nat')
    verify()
    g.rows_setup()
    vR1 = [V.get(1), V.get(1)]
    vF, vFa, vX = V.get(1), V.get(1), V.get(1)
    accs = []
    for _ in range(2):
        acc_ = V.get(32, 2)
        accs.append([[acc_.sub(8 * i + 4 * tau, 4) for tau in range(2)] for i in range(4)])
    ring = V.get(24, 2)
    ob = V.get(16, 2)
    sI, sL, sS, sPre, sOut0, sOut1, sFl, sA, sMb, sPubA, sPubV, sSt, nPubA, nPubV, nSt = (S.get(1) for _ in range(15))
    NI = 128 if only is None else only
    p(f'''
    v_and_b32 {vFa}, 3, {g.vLane}
    v_lshlrev_b32 {vFa}, {L.FS}, {vFa}
    v_add_u32 {vFa}, {L.F_R2}, {vFa}
    v_add_u32 {vR1[0]}, 40960, {g.vR[0]}
    v_add_u32 {vR1[1]}, 40960, {g.vR[1]}
    s_lshl_b32 {t[0]}, {sCol}, 12
    s_mov_b32 {t[1]}, {L.QF}
    s_cmp_eq_u32 {sM}, 1
    s_cselect_b32 {sOut0}, {L.KF[0]}, {t[1]}
    s_cselect_b32 {sOut1}, {L.KF[1]}, {t[1]}
    s_cmp_eq_u32 {sM}, 2
    s_cselect_b32 {sOut0}, {L.VF[0]}, {sOut0}
    s_cselect_b32 {sOut1}, {L.VF[1]}, {sOut1}
    s_add_u32 {sOut0}, {sOut0}, {t[0]}
    s_add_u32 {sOut1}, {sOut1}, {t[0]}
    s_lshl_b32 {sFl}, {sC}, 2
    s_add_u32 {sFl}, {sFl}, {sW}
    s_lshl_b32 {sFl}, {sFl}, {L.FS}
    s_add_u32 {sFl}, {sFl}, {L.F_QKV}
    s_mov_b32 {sI}, 0
    s_mov_b32 {sL}, 0
    s_mov_b32 {sS}, 0
    s_lshl_b32 {sMb}, {sW}, 10
    s_mov_b32 {sA}, {L.XN[0]}
    ''')

    def out_of():
        return f'''s_mul_i32 {t[0]}, {sS}, {L.SEG_F}
        s_cmp_eq_u32 {sL}, 0
        s_cselect_b32 {t[1]}, {sOut0}, {sOut1}
        s_add_u32 {nSt}, {t[0]}, {t[1]}
        s_lshl_b32 {nPubA}, {sL}, {9 + L.FS}
        s_add_u32 {nPubA}, {nPubA}, {sFl}
        s_add_u32 {nPubV}, {sS}, 1'''.split('\n')

    def advance():
        return f'''s_add_u32 {sI}, {sI}, 1
        s_sub_u32 {t[0]}, {sI}, {LEAD}
        s_lshr_b32 {t[1]}, {t[0]}, 1
        s_add_u32 {t[2]}, {t[1]}, {LEAD}
        s_bitcmp1_b32 {t[0]}, 0
        s_cselect_b32 {sS}, {t[2]}, {t[1]}
        s_cselect_b32 {sL}, 0, 1
        s_cmp_lt_u32 {sI}, {LEAD}
        s_cselect_b32 {sS}, {sI}, {sS}
        s_cselect_b32 {sL}, 0, {sL}
        s_sub_u32 {t[0]}, {sI}, 64
        s_cmp_ge_u32 {sI}, {128 - LEAD}
        s_cselect_b32 {sS}, {t[0]}, {sS}
        s_cselect_b32 {sL}, 1, {sL}
        s_mul_i32 {sA}, {sS}, {L.SEG_X}
        s_cmp_eq_u32 {sL}, 0
        s_cselect_b32 {t[0]}, 0, {L.XN[1] - L.XN[0]}
        s_add_u32 {sA}, {sA}, {t[0]}
        s_add_u32 {sA}, {sA}, {L.XN[0]}
        s_xor_b32 {sMb}, {sMb}, 40960'''.split('\n')

    def publish():
        p(f's_mov_b64 exec, 1\nv_mov_b32 {vX}, {sPubV}\nbuffer_store_dword {vX}, off, {ws}, {sPubA} sc1\ns_mov_b64 exec, -1')

    def epilogue(acc, swap):
        out = []
        for q in range(4):
            d = ob.sub(4 * q, 4)
            if swap:
                a, b = acc[q][0], acc[q][1]
            else:
                a, b = acc[2 * (q >> 1)][q & 1], acc[2 * (q >> 1) + 1][q & 1]
            out.append(cvt2(d.sub(0, 2), a).split('\n') + cvt2(d.sub(2, 2), b).split('\n') +
                       [f'buffer_store_dwordx4 {d}, {g.vL16}, {ws}, {sSt} offen offset:{1024 * q} sc1'])
        return out

    mk = Marks(p, C, V, C.base)
    p(f's_cmp_eq_u32 {sM}, 2\ns_cbranch_scc1 L_qkv_v')
    for swap in (False, True):
        if swap:
            p.label('L_qkv_v')
        first = p.uid('Lqf')
        cold = [p.uid('Lqc'), p.uid('Lqc')]
        warm = [p.uid('Lqw'), p.uid('Lqw')]
        p(f's_branch {first}')
        for par in range(2):
            acc, prev = accs[par], accs[1 - par]
            mid, nopub, nopre, done = (p.uid(x) for x in ('Lqm', 'Lqn', 'Lqp', 'Lqd'))
            extra = [0]

            def wait_chunk(k0, k1):
                p(f's_waitcnt vmcnt({10 - k1 // 2 + extra[0]})\ns_barrier')
            head, step = g.stepper(acc, ring, lambda d, k, tau: g.rows_read(d, k, tau, vR1 if par else None), swap, [0, 2, 6, 10, 14], wait_chunk)
            HK = 4
            book = out_of() + advance()
            bk = [book[7 * i:7 * i + 7] for i in range(HK)]
            p.label(cold[par])
            for e in epilogue(prev, swap):
                p('\n'.join(e))
            p(f'buffer_load_dword {vF}, {vFa}, {ws}, 0 offen sc1\ns_waitcnt vmcnt(1)')
            publish()
            skip = p.uid('Lqs')
            p(f's_cmp_ge_u32 {sI}, {NI}\ns_cbranch_scc1 {done}\ns_waitcnt vmcnt(1)')
            p(f'v_cmp_lt_u32 vcc, {sS}, {vF}\ns_cmp_eq_u64 vcc, -1\ns_cbranch_scc1 {skip}')
            if par == 0:
                p.label(first)
            p(f's_cmp_eq_u32 {sL}, 0\ns_cbranch_scc1 {skip}\ns_add_u32 {t[3]}, {sS}, 1')
            g.wait_flags(vF, vFa, t[3])
            p.label(skip)
            mk.mark(0)
            p(f'buffer_load_dword {vF}, {vFa}, {ws}, 0 offen sc1\ns_mov_b32 {sPre}, 0')
            for kb in range(10):
                p(g.rows_dma(kb, sMb, sA))
            mk.mark(1)
            if mk.on:
                p(f's_lshl_b32 {t[0]}, {sL}, 8\ns_add_u32 {t[0]}, {t[0]}, {sS}')
                mk.value(3, t[0])
            head()
            for k in range(HK):
                step(k, bk[k])
            p(f's_branch {mid}')
            p.label(warm[par])
            p(f'buffer_load_dword {vF}, {vFa}, {ws}, 0 offen sc1\ns_mov_b32 {sPre}, 1')
            mk.mark(1)
            if mk.on:
                p(f's_lshl_b32 {t[0]}, {sL}, 8\ns_add_u32 {t[0]}, {t[0]}, {sS}\ns_add_u32 {t[0]}, {t[0]}, 0x10000')
                mk.value(3, t[0])
            head()
            ep = epilogue(prev, swap)
            for k in range(HK):
                step(k, ep[k] + bk[k])
            p.label(mid)
            FK = 7
            for k in range(HK, FK):
                step(k)
            ok = p.uid('Lqo')
            p(f'''
            s_cmp_ge_u32 {sI}, {NI}
            s_cbranch_scc1 {nopre}
            s_cmp_eq_u32 {sL}, 0
            s_cbranch_scc1 {ok}
            s_waitcnt vmcnt(4)
            v_cmp_lt_u32 vcc, {sS}, {vF}
            s_cmp_eq_u64 vcc, -1
            s_cbranch_scc0 {nopre}
            {ok}:
            ''')
            for pref in (True, False):
                if not pref:
                    p.label(nopre)
                extra[0] = 0
                for k in range(FK, 20):
                    fs = []
                    if pref and k - FK < 10:
                        fs = g.rows_dma(k - FK, sMb, sA).split('\n')
                    if k == 19:
                        fs = [f's_mov_b32 {sSt}, {nSt}', f's_mov_b32 {sPubA}, {nPubA}', f's_mov_b32 {sPubV}, {nPubV}']
                    step(k, fs)
                    if pref and k - FK < 10:
                        extra[0] += 1
                    if k == PUB:
                        nopub = p.uid('Lqn')
                        p(f's_cmp_eq_u32 {sPre}, 1\ns_cbranch_scc0 {nopub}\ns_waitcnt vmcnt({extra[0]})')
                        publish()
                        p.label(nopub)
                mk.mark(2)
                mk.flush()
                p(f's_branch {(warm if pref else cold)[1 - par]}')
            extra[0] = 0
            p.label(done)
            clock_dump(p, C, V)
            p('s_endpgm')


def pipe_loop(p, g, name, vF, vFa, sFlag, acc, ring, read, starts, ND, N0, per_dma, setup, dma, epilogue, nst,
              KH, KPUB, KFL, KF, swapbuf=None, late=None):
    S, ws, t, nk = g.S, g.C.srd_ws, g.t, g.nk
    sS, sN1, sPre, sPub = S.get(1), S.get(1), S.get(1), S.get(1)
    ar = Arrive(p, g.C, g.V, 4) if sFlag is not None else None
    mk = Marks(p, g.C, g.V, g.C.base)
    cold, warm, first, mid, nopre, done, spin, go = (p.uid('L' + name + x) for x in 'cwfmndsg')
    q = []

    def wait_chunk(k0, k1):
        need = -(-k1 // per_dma) - 1
        p(f's_waitcnt vmcnt({len(q) - 1 - q.index(need)})\ns_barrier')

    def issue(j, tag=None):
        dma(j)
        q.append(j if tag is None else tag)

    def publish():
        if sFlag is not None:
            ar.publish(sPub, sFlag)

    head, step = g.stepper(acc, ring, read, False, starts, wait_chunk)

    def fills(k):
        j = N0 + k
        return [lambda: issue(j)] if j < ND else []

    p(f's_mov_b32 {sS}, 0\ns_mov_b32 {sN1}, 1')
    setup(sS)
    p(f's_mov_b32 {g.sTo}, 0\ns_branch {spin}')
    p.label(cold)
    p(f's_mov_b32 {g.sTo}, 0\ns_waitcnt vmcnt(0)')
    publish()
    p(f's_cmp_ge_u32 {sS}, {L.NSEG}\ns_cbranch_scc1 {done}')
    p.label(spin)
    g.timeout()
    p(f'''
    buffer_load_dword {vF}, {vFa}, {ws}, 0 offen sc1
    s_waitcnt vmcnt(0)
    v_cmp_le_u32 vcc, {sN1}, {vF}
    s_cmp_eq_u64 vcc, -1
    s_cbranch_scc0 {spin}
    ''')
    p.label(go)
    mk.mark(0)
    q[:] = []
    for j in range(N0):
        issue(j)
    p(f's_mov_b32 {sPre}, 0')
    head()
    for k in range(KH):
        step(k, fills(k))
    qc = list(q)
    p(f's_branch {mid}')
    p.label(warm)
    mk.mark(0)
    q[:] = list(range(N0)) + ['s'] * (nst + (1 if mk.on else 0))
    p(f's_mov_b32 {sPre}, 1')
    head()
    for k in range(KH):
        step(k, fills(k))
    nyoung = len(q) - 1 - max(i for i, x in enumerate(q) if x == 's') if 's' in q else 0
    q[:] = qc
    p.label(mid)
    for k in range(KH, KF):
        fs = fills(k)
        if k == KFL:
            fs = fs + [lambda: (p(f'buffer_load_dword {vF}, {vFa}, {ws}, 0 offen sc1'), q.append('f'))]
        n0 = len(q)
        step(k, fs + (late(k, sS, q) if late else []))
        nyoung += len(q) - n0
        if k == KPUB and sFlag is not None:
            nopub = p.uid('Lnp')
            p(f's_cmp_eq_u32 {sPre}, 1\ns_cbranch_scc0 {nopub}\ns_waitcnt vmcnt({nyoung})')
            publish()
            p.label(nopub)
    assert all(k0 - 2 < KF for k0 in starts)
    p(f'''
    s_mov_b32 {sPub}, {sN1}
    s_cmp_ge_u32 {sN1}, {L.NSEG}
    s_cbranch_scc1 {nopre}
    s_waitcnt vmcnt({len(q) - 1 - q.index('f')})
    v_cmp_lt_u32 vcc, {sN1}, {vF}
    s_cmp_eq_u64 vcc, -1
    s_cbranch_scc0 {nopre}
    ''')
    for pref in (True, False):
        if not pref:
            p.label(nopre)
        out = epilogue(sS, None)
        setup(sN1)
        npre = 0
        for k in range(KF, nk):
            n = -(-(N0 - npre) // (nk - k)) if pref else 0
            step(k, [(lambda j=j: dma(j)) for j in range(npre, npre + n)])
            npre += n
        mk.mark(1)
        epilogue(sS, npre)
        p(f's_mov_b32 {sS}, {sN1}\ns_add_u32 {sN1}, {sN1}, 1')
        if swapbuf:
            swapbuf()
        mk.mark(2)
        mk.value(3, sPub)
        mk.flush()
        p(f's_branch {warm if pref else cold}')
    p.label(done)
    clock_dump(p, g.C, g.V)
    p('s_endpgm')


def gen_gu(p, C, verify):
    g = G(p, C, 20, 4)
    S, V, t, ws, sW, sC = g.S, g.V, g.t, C.srd_ws, C.sW, C.sRole
    srd, srd2, ptr = S.get(4), S.get(4), S.get(4, 4)
    sL, sCol, sFlag, sA, sMb = (S.get(1) for _ in range(5))
    p(f'''
    s_load_dwordx4 {ptr}, {C.karg}, 64
    s_cmp_ge_u32 {sC}, 12
    s_cselect_b32 {sL}, 1, 0
    s_mul_i32 {t[0]}, {sL}, 12
    s_sub_u32 {t[0]}, {sC}, {t[0]}
    s_lshl_b32 {sCol}, {t[0]}, 2
    s_add_u32 {sCol}, {sCol}, {sW}
    s_lshl_b32 {sFlag}, {sL}, 6
    s_add_u32 {sFlag}, {sFlag}, {t[0]}
    s_lshl_b32 {sFlag}, {sFlag}, {L.FS}
    s_add_u32 {sFlag}, {sFlag}, {L.F_GU}
    s_lshl_b32 {t[4]}, {sCol}, 6
    s_waitcnt lgkmcnt(0)
    ''')
    srd_from(p, srd, ptr[0:2], 640 * 3072)
    srd_from(p, srd2, ptr[2:4], 640 * 3072)
    g.load_weights([(srd, t[4], 64, [0, 1]), (srd2, t[4], 64, [2, 3])], 3072, 5, 'nat')
    verify()
    g.rows_setup()
    vF, vFa = V.get(1), V.get(1)
    acc_ = V.get(32, 2)
    acc = [[acc_.sub(8 * i + 4 * tau, 4) for tau in range(2)] for i in range(4)]
    ring = V.get(24, 2)
    ob = V.get(8, 2)
    sNl = S.get(1)
    p(f'''
    v_and_b32 {vFa}, 3, {g.vLane}
    v_lshlrev_b32 {vFa}, {L.FS}, {vFa}
    s_lshl_b32 {t[0]}, {sL}, {6 + L.FS}
    s_add_u32 {t[0]}, {t[0]}, {L.F_R1}
    v_add_u32 {vFa}, {t[0]}, {vFa}
    s_lshl_b32 {sMb}, {sW}, 10
    s_mov_b32 {sNl}, 0xbfb8aa3b
    ''')

    sSt = S.get(1)
    p(f's_xor_b32 {sMb}, {sMb}, 40960')

    def setup(s_):
        p(f's_mul_i32 {sA}, {s_}, {L.SEG_X}\ns_add_u32 {sA}, {sA}, {L.XAN}\ns_xor_b32 {sMb}, {sMb}, 40960')

    def swapbuf():
        p(f'v_xor_b32 {g.vR[0]}, 40960, {g.vR[0]}\nv_xor_b32 {g.vR[1]}, 40960, {g.vR[1]}')

    def epilogue(sS, npre):
        if npre is None:
            p(f's_mul_i32 {t[0]}, {sS}, {L.SEG_H}\ns_lshl_b32 {t[1]}, {sCol}, 11\ns_add_u32 {t[0]}, {t[0]}, {t[1]}\ns_add_u32 {sSt}, {t[0]}, {L.HF}')
            return
        for tau in range(2):
            gs = [acc[i][tau][r] for i in range(2) for r in range(4)]
            us = [acc[2 + i][tau][r] for i in range(2) for r in range(4)]
            for x in gs:
                p(f'v_mul_f32 {x}, {sNl}, {x}')
            for x in gs:
                p(f'v_exp_f32 {x}, {x}')
            for x in gs:
                p(f'v_add_f32 {x}, 1.0, {x}')
            for x in gs:
                p(f'v_rcp_f32 {x}, {x}')
            for x, u in zip(gs, us):
                p(f'v_mul_f32 {x}, {x}, {u}')
            d = ob.sub(4 * tau, 4)
            p(cvt2(d.sub(0, 2), acc[0][tau]))
            p(cvt2(d.sub(2, 2), acc[1][tau]))
            p(f'buffer_store_dwordx4 {d}, {g.vL16}, {ws}, {sSt} offen offset:{1024 * tau} sc1')

    pipe_loop(p, g, 'gu', vF, vFa, sFlag, acc, ring, g.rows_read, [0, 2, 6, 10, 14], 10, 10, 2, setup,
              lambda j: p(g.rows_dma(j, sMb, sA)), epilogue, 2, 1, 7, 9, 14, swapbuf=swapbuf)


def gen_od(p, C, verify, kind, N0=9):
    g = G(p, C, 48, 2)
    S, V, t, ws, sW, sC = g.S, g.V, g.t, C.srd_ws, C.sW, C.sRole
    srd, out, ptr = S.get(4), S.get(4), S.get(2)
    sL, sKg, sNu, sFlag, sA, sMb, sOut, sColb = (S.get(1) for _ in range(8))
    n = 20 if kind == 'o' else 5
    p(f'''
    s_load_dwordx2 {ptr}, {C.karg}, {40 if kind == 'o' else 80}
    s_cmp_ge_u32 {sC}, {n}
    s_cselect_b32 {sL}, 1, 0
    s_mul_i32 {t[0]}, {sL}, {n}
    s_sub_u32 {t[0]}, {sC}, {t[0]}
    s_lshl_b32 {sFlag}, {sL}, 7
    s_add_u32 {sFlag}, {sFlag}, {t[0]}
    s_lshl_b32 {sFlag}, {sFlag}, {L.FS}
    s_add_u32 {sFlag}, {sFlag}, {L.F_O if kind == 'o' else L.F_D}
    s_mul_i32 {sKg}, {t[0]}, 0x3334
    s_lshr_b32 {sKg}, {sKg}, 16
    s_mul_i32 {t[1]}, {sKg}, 5
    s_sub_u32 {sNu}, {t[0]}, {t[1]}
    s_lshl_b32 {t[0]}, {sNu}, 8
    s_lshl_b32 {t[1]}, {sW}, 6
    s_add_u32 {t[0]}, {t[0]}, {t[1]}
    s_mov_b32 {sColb}, {t[0]}
    s_lshl_b32 {sOut}, {t[0]}, 6
    s_mul_i32 {t[4]}, {sKg}, {1536 * 1280}
    s_add_u32 {t[4]}, {t[4]}, {t[0]}
    s_mul_i32 {t[1]}, {sKg}, {L.SEG_X4}
    s_add_u32 {sOut}, {sOut}, {t[1]}
    s_add_u32 {sOut}, {sOut}, {L.PO if kind == 'o' else L.PD}
    s_waitcnt lgkmcnt(0)
    ''')
    srd_from(p, srd, ptr, (6144 if kind == 'o' else 1536) * 1280)
    if kind == 'd':
        p(f's_load_dwordx2 {ptr}, {C.karg}, 88\ns_waitcnt lgkmcnt(0)')
        srd_from(p, out, ptr, 2048 * 1280)
    g.load_weights([(srd, t[4], 64, [0, 1])], 1280, 10, 'pair', pair_cols=True)
    verify()
    vF, vFa, vO, vR2, vX, x = (V.get(1) for _ in range(6))
    acc_ = V.get(16, 2)
    acc = [[acc_.sub(8 * i + 4 * tau, 4) for tau in range(2)] for i in range(2)]
    ring = V.get(24, 2)
    xa = V.get(16, 2)
    if kind == 'o':
        p(f'v_and_b32 {vFa}, 3, {g.vLane}\ns_lshl_b32 {t[0]}, {sKg}, 2\nv_add_u32 {vFa}, {t[0]}, {vFa}')
    else:
        p(f'v_min_u32 {vFa}, 11, {g.vLane}')
    p(f'''
    v_lshlrev_b32 {vFa}, {L.FS}, {vFa}
    s_lshl_b32 {t[0]}, {sL}, {6 + L.FS}
    s_add_u32 {t[0]}, {t[0]}, {L.F_AT if kind == 'o' else L.F_GU}
    v_add_u32 {vFa}, {t[0]}, {vFa}
    v_and_b32 {vO}, 15, {g.vLane}
    v_lshrrev_b32 {x}, 4, {g.vLane}
    v_mul_u32_u24 {vX}, 1280, {vO}
    v_lshl_add_u32 {vX}, {x}, 4, {vX}
    v_add_u32 {vX}, {sColb}, {vX}
    v_lshlrev_b32 {vO}, 6, {vO}
    v_lshl_add_u32 {vO}, {x}, 4, {vO}
    v_add_u32 {vR2}, 49152, {g.vL16}
    s_lshl_b32 {sMb}, {sW}, 10
    ''')
    vX2 = x
    p(f'v_lshlrev_b32 {vX2}, 1, {vX}')
    sSt = S.get(1)

    def one(j):
        p(f's_add_u32 m0, {sMb}, {4096 * j}\ns_add_u32 {t[0]}, {sA}, {4096 * j}')
        p(f'buffer_load_dwordx4 {g.vL16}, {ws}, {t[0]} offen sc1 lds')

    def setup(s_):
        if kind == 'o':
            p(f's_mul_i32 {sA}, {s_}, {L.SEG_F}\ns_mul_i32 {t[0]}, {sKg}, 98304\ns_add_u32 {sA}, {sA}, {t[0]}\ns_add_u32 {sA}, {sA}, {L.OF}')
        else:
            p(f's_mul_i32 {sA}, {s_}, {L.SEG_H}\ns_add_u32 {sA}, {sA}, {L.HF}')
        p(f's_add_u32 {sA}, {sA}, {sMb}')

    def read(d, k, tau):
        return f'ds_read_b128 {d}, {vR2 if k >= 24 else g.vL16} offset:{(k % 24) * 2048 + tau * 1024}'

    def make(final):
        def late(k, sS, q):
            if not final or k not in (22, 24, 26, 28):
                return []
            tau, i = divmod((k - 22) // 2, 2)

            def f():
                if k == 22:
                    p(f's_mul_i32 {t[1]}, {sS}, {L.SEG_X4}\ns_add_u32 {t[1]}, {t[1]}, {L.XA}\ns_add_u32 {t[2]}, {t[1]}, {16 * 2560}')
                p(f'buffer_load_dwordx4 {xa.sub(8 * tau + 4 * i, 4)}, {vX2}, {ws}, {t[1 + tau]} offen offset:{16 * i} sc1')
                q.append('x')
            return [f]

        def epilogue(sS, npre):
            if npre is None:
                if final:
                    p(f's_mul_i32 {sSt}, {sS}, {L.SEG_X}')
                else:
                    p(f's_mul_i32 {sSt}, {sS}, {L.SEG_PO if kind == "o" else L.SEG_X4}\ns_add_u32 {sSt}, {sSt}, {sOut}')
                return
            if not final:
                for tau in range(2):
                    for i in range(2):
                        p(f'buffer_store_dwordx4 {acc[i][tau]}, {vO}, {ws}, {sSt} offen offset:{2048 * tau + 1024 * i} sc1')
                return
            p(f's_add_u32 {t[1]}, {sSt}, {16 * 1280}\ns_waitcnt vmcnt({npre})')
            for tau in range(2):
                for i in range(2):
                    for r in range(4):
                        p(f'v_add_f32 {acc[i][tau][r]}, {acc[i][tau][r]}, {xa[8 * tau + 4 * i + r]}')
                d = xa.sub(8 * tau, 4)
                p(cvt2(d.sub(0, 2), acc[0][tau]))
                p(cvt2(d.sub(2, 2), acc[1][tau]))
                p(f'buffer_store_dwordx4 {d}, {vX}, {out}, {t[1] if tau else sSt} offen')
        pipe_loop(p, g, kind, vF, vFa, None if final else sFlag, acc, ring, read, [0, 2, 6, 10, 14, 20, 30], 24, N0, 2, setup, one,
                  epilogue, 2 if final else 4, 12, 16, 30, 38, late=late)

    if kind == 'd':
        p(f's_cmp_eq_u32 {sL}, 1\ns_cbranch_scc1 L_d_final')
    make(False)
    if kind == 'd':
        p.label('L_d_final')
        make(True)
```

```python
NSEG = 64
_off = [0]
def _alloc(n, align=4096):
    o = (_off[0] + align - 1) // align * align
    _off[0] = o + n
    return o

FS = 7
FLAGS_BYTES = 2048 << FS
FLAGS = _alloc(FLAGS_BYTES)
F_QKV = FLAGS + (0 << FS)
F_REC = FLAGS + (1024 << FS)
F_AT  = FLAGS + (1088 << FS)
F_O   = FLAGS + (1216 << FS)
F_R1  = FLAGS + (1472 << FS)
F_GU  = FLAGS + (1600 << FS)
F_D   = FLAGS + (1728 << FS)
F_R2  = FLAGS + (1856 << FS)
F_NUL = FLAGS + (1920 << FS)
XB_SLOT = 64 * 3072
XB = _alloc(2 * XB_SLOT)
ZB_SLOT = 20480
ZB = _alloc(2 * 4 * ZB_SLOT)
YB_SLOT = 2 * 80 * 1024
YB = _alloc(4 * YB_SLOT)
YL = _alloc(4 * YB_SLOT)
OB_SLOT = 64 * 3072
OB = _alloc(2 * OB_SLOT)
SENT_END = _off[0]
MAXSTEP = 80
KM_STEP = 32 * 6144
KM = _alloc(MAXSTEP * KM_STEP)
VM = _alloc(MAXSTEP * KM_STEP)
SEG_F = 32 * 12288
QF = _alloc(NSEG * SEG_F)
KF = [_alloc(NSEG * SEG_F), None]
VF = [_alloc(NSEG * SEG_F), None]
KF[1] = _alloc(NSEG * SEG_F)
VF[1] = _alloc(NSEG * SEG_F)
OF = _alloc(NSEG * SEG_F)
SEG_X = 32 * 1280
SEG_X4 = 32 * 2560
XN = [_alloc(NSEG * SEG_X), _alloc(NSEG * SEG_X)]
XAN = _alloc(NSEG * SEG_X)
XA = _alloc(NSEG * SEG_X4)
XR = [_alloc(NSEG * SEG_X4), _alloc(NSEG * SEG_X4)]
PD = _alloc(NSEG * SEG_X4)
SEG_PO = 4 * SEG_X4
PO = _alloc(NSEG * SEG_PO)
SEG_H = 48 * 2048
HF = _alloc(NSEG * SEG_H)
PROF = _alloc(1 << 20)
TRACE = _alloc(256 * 96 * 256)
BTRACE = _alloc(256 * 4 * 128 * 16)
END = _off[0]
assert END <= 268435456, END
```

```python
from common import *
import layout as L
import rec

class Ctx: pass

def gen_main(DELTA, roles, prof=False, force_remote=False, opt=None, btrace=False, place=None):
    p = Prog()
    C = Ctx()
    S = Alloc('s', 3, 102)
    C.S = S
    C.btrace = btrace
    C.karg = Reg('s', 0, 2)
    C.srd_ws = S.get(4)
    dbg = S.get(4)
    C.sW, C.sRole, C.sMode = S.get(1), S.get(1), S.get(1)
    sX, sRank, sTick, sA, sB = (S.get(1) for _ in range(5))
    C.fail = 'L_fail'
    ws = C.srd_ws
    if prof:
        C.tstart = S.get(2)
        C.rstart = S.get(2)
        p(f's_memtime {C.tstart}\ns_memrealtime {C.rstart}')
    p(f'''
    s_cmp_ge_u32 s2, 256
    s_cbranch_scc1 L_exit
    s_load_dwordx2 {dbg[0:2]}, {C.karg}, 96
    s_load_dwordx2 {ws[0:2]}, {C.karg}, 104
    s_getreg_b32 {sX}, hwreg(HW_REG_XCC_ID, 0, 4)
    s_and_b32 {sX}, {sX}, 7
    v_lshrrev_b32 v1, 6, v0
    v_readfirstlane_b32 {C.sW}, v1
    s_waitcnt lgkmcnt(0)
    s_mov_b32 {dbg[2]}, 256
    s_mov_b32 {dbg[3]}, 0x20000
    s_mov_b32 {ws[2]}, 0x10000000
    s_mov_b32 {ws[3]}, 0x20000
    v_mov_b32 v3, 0
    s_cmp_eq_u32 {C.sW}, 0
    s_cbranch_scc0 L_noticket
    s_lshl_b32 {sA}, {sX}, 2
    v_mov_b32 v1, {sA}
    v_mov_b32 v2, 32
    v_cmp_eq_u32 vcc, 0, v0
    v_cndmask_b32 v1, v2, v1, vcc
    v_mov_b32 v2, 1
    s_mov_b64 exec, 3
    buffer_atomic_add v2, v1, {dbg}, 0 offen sc0
    v_lshlrev_b32 v1, 2, v0
    s_waitcnt vmcnt(0)
    ds_write_b32 v1, v2
    s_mov_b64 exec, -1
    s_waitcnt lgkmcnt(0)
    L_noticket:
    s_barrier
    ds_read_b64 v[4:5], v3
    s_waitcnt lgkmcnt(0)
    v_readfirstlane_b32 {sRank}, v4
    v_readfirstlane_b32 {sTick}, v5
    s_barrier
    s_mov_b32 {C.sMode}, 0
    ''')
    place = place or [[(32, 32 * x)] for x in range(8)]
    assert sorted(b + i for runs in place for n, b in runs for i in range(n)) == list(range(256))
    p(f's_lshl_b32 {sA}, {sX}, 5\ns_add_u32 {sA}, {sA}, {sRank}\ns_mov_b32 {C.sRole}, 0')
    lo = 0
    for runs in place:
        for n, b in runs:
            p(f's_cmp_ge_u32 {sA}, {lo}\ns_cselect_b32 {C.sRole}, {(b - lo) & 0xffffffff}, {C.sRole}')
            lo += n
    p(f's_add_u32 {C.sRole}, {C.sRole}, {sA}')
    if force_remote:
        p('s_branch L_fallback')
    p(f'''
    s_cmp_lt_u32 {sRank}, 32
    s_cbranch_scc1 L_dispatch
    L_fallback:
    s_mov_b32 {C.sRole}, {sTick}
    s_mov_b32 {C.sMode}, 1
    s_waitcnt vmcnt(0) lgkmcnt(0)
    s_barrier
    L_dispatch:
    ''')

    def verify():
        lp, ok = p.uid('Lver'), p.uid('Lverok')
        p(f'''
        s_cmp_eq_u32 {C.sMode}, 1
        s_cbranch_scc1 {ok}
        s_mov_b32 {sB}, 0
        {lp}:
        s_add_u32 {sB}, {sB}, 1
        s_cmp_gt_u32 {sB}, {rec.TIMEOUT}
        s_cbranch_scc1 {C.fail}
        v_and_b32 v254, 7, v0
        v_lshlrev_b32 v254, 2, v254
        buffer_load_dword v255, v254, {dbg}, 0 offen sc1
        s_waitcnt vmcnt(0)
        v_cmp_eq_u32 vcc, 32, v255
        s_cmp_eq_u64 vcc, -1
        s_cbranch_scc1 {ok}
        s_mov_b32 {sA}, 0
        ''')
        for k in range(8):
            p(f'v_readlane_b32 {sX}, v255, {k}\ns_add_u32 {sA}, {sA}, {sX}')
        p(f's_cmp_eq_u32 {sA}, 256\ns_cbranch_scc1 L_fallback\ns_branch {lp}')
        p.label(ok)

    mark = list(S.used)
    lo = 0
    for (name, n, fn) in roles:
        p(f's_cmp_lt_u32 {C.sRole}, {lo + n}\ns_cbranch_scc1 L_role_{name}')
        lo += n
    p('s_branch L_exit')
    p(f'''
    L_fail:
    s_waitcnt vmcnt(0) lgkmcnt(0)
    s_mov_b64 exec, 1
    v_mov_b32 v1, 0xdead
    buffer_store_dword v1, off, {dbg}, 0 offset:64 sc1
    L_exit:
    s_endpgm
    ''')
    lo = 0
    for (name, n, fn) in roles:
        S.used = list(mark)
        p.label(f'L_role_{name}')
        if lo:
            p(f's_sub_u32 {C.sRole}, {C.sRole}, {lo}')
        C.base = lo
        fn(p, C, verify)
        lo += n
    return p, S.high + 1
```

```python
import struct
from common import *
import layout as L

WO_LDS = 0
MEM_LDS = 122880
RX = 0
QKX = 20480
UX = QKX + 6144
VX = UX + 2048
VP = VX + 2048
LDS_END = MEM_LDS + VP + 3072
BUF = 61440
OOB = 0x7ff00000
TIMEOUT = 200000
TAU = [(0, 4), (1, 5), (2, 3)]


def mf32(d, a, b, c):
    return f'v_mfma_f32_16x16x32_bf16 {d}, {a}, {b}, {c}'


def mf16(d, a, b, c):
    return f'v_mfma_f32_16x16x16_bf16 {d}, {a}, {b}, {c}'


def cvt2(d, a):
    return f'v_cvt_pk_bf16_f32 {d[0]}, {a[0]}, {a[1]}\nv_cvt_pk_bf16_f32 {d[1]}, {a[2]}, {a[3]}'


def maxchain(p, acc, regs):
    regs = [regs[i] for i in range(len(regs))]
    p(f'v_max3_u32 {acc}, {regs[0]}, {regs[1]}, {regs[2]}')
    regs = regs[3:]
    while len(regs) >= 2:
        p(f'v_max3_u32 {acc}, {acc}, {regs[0]}, {regs[1]}')
        regs = regs[2:]
    if regs:
        p(f'v_max_u32 {acc}, {acc}, {regs[0]}')


class Filler:
    def __init__(self, p, items):
        self.p, self.items, self.narrow = p, [x.strip() for x in items if x.strip()], False

    def pop(self, n=1):
        for _ in range(n):
            if self.items:
                x = self.items.pop(0)
                if ' exec,' in x:
                    self.narrow = not x.endswith('exec, -1')
                self.p(x)

    def restore(self):
        while self.narrow:
            self.pop()


class Prof:
    def __init__(self, p, S, n, on):
        self.p, self.on, self.n = p, on, n
        self.trace = None
        if on:
            self.acc = [S.get(1) for _ in range(n)]
            self.t = S.get(2)
            self.last = S.get(1)

    def init(self):
        if self.on:
            for a in self.acc:
                self.p(f's_mov_b32 {a}, 0')
            self.p(f's_memtime {self.t}\ns_waitcnt lgkmcnt(0)\ns_mov_b32 {self.last}, {self.t[0]}')

    def stamp(self, k):
        if self.trace is not None:
            self.p(f's_memtime {self.t}\ns_waitcnt lgkmcnt(0)\nv_writelane_b32 {self.trace}, {self.t[0]}, {k}')
            return
        if self.on and (self.on is True or k in self.on):
            self.p(f's_memtime {self.t}\ns_waitcnt lgkmcnt(0)\ns_sub_u32 {self.last}, {self.t[0]}, {self.last}\n'
                   f's_add_u32 {self.acc[k]}, {self.acc[k]}, {self.last}\ns_mov_b32 {self.last}, {self.t[0]}')

    def count(self, k, s):
        if self.trace is not None:
            self.p(f'v_writelane_b32 {self.trace}, {s}, {k}')
        elif self.on:
            self.p(f's_add_u32 {self.acc[k]}, {self.acc[k]}, {s}')

    def dump(self, srd, vtmp, vtmp2, sbase):
        if self.on:
            p = self.p
            p(f'v_mov_b32 {vtmp}, 0')
            for k, a in enumerate(self.acc):
                p(f'v_writelane_b32 {vtmp}, {a}, {k}')
            p(f'v_mbcnt_lo_u32_b32 {vtmp2}, -1, 0\nv_mbcnt_hi_u32_b32 {vtmp2}, -1, {vtmp2}\nv_lshlrev_b32 {vtmp2}, 2, {vtmp2}')
            p(f'buffer_store_dword {vtmp}, {vtmp2}, {srd}, {sbase} offen')


def gen_rec(p, C, DELTA, verify, prof=False, opt=None):
    o = dict(xpoll_at=8, xstep=3, odelay=0, noextra=False, own_pre=3, yretry=0, pub='y', pubdelay=0, ksplit=True, zprobe=True, oprobe=1, ysets=3, ygap=3, zgap=0, ogap=0, k_early=0, nok=False, nov=False, nopub=False, trace=False, ydelay=0, zdelay=0, nsteps=L.NSEG + DELTA, wring=10)
    o.update(opt or {})
    NSTEP = o['nsteps']
    S = C.S
    V = Alloc('v', 1, 256)
    A = Alloc('a', 0, 256)
    ws, sW, sC = C.srd_ws, C.sW, C.sRole
    srd = S.get(4)
    sL, sG = S.get(1), S.get(1)
    t0, t1, t2, t3 = S.get(1), S.get(1), S.get(1), S.get(1)
    ptr = S.get(8, 4)

    def wfrag():
        try:
            return A.get(4, 4)
        except RuntimeError:
            return V.get(4, 4)

    WQK = [[wfrag() for k in range(20)] for i in range(3)]
    WV1 = [wfrag() for k in range(20)]
    WV2 = [wfrag() for k in range(10)]
    vLane, vL16 = V.get(1), V.get(1)
    p(f'''
    s_and_b32 {sL}, {sC}, 31
    s_lshr_b32 {sG}, {sC}, 5
    v_and_b32 {vLane}, 63, v0
    v_lshlrev_b32 {vL16}, 4, {vLane}
    s_load_dwordx8 {ptr}, {C.karg}, 16
    ''')
    vo = [V.get(1) for _ in range(3)]
    voo = [V.get(1) for _ in range(5)]
    vt, vu = V.get(1), V.get(1)
    vTR = [V.get(1), V.get(1)]
    vTRv = [V.get(1), V.get(1)]
    vTRo = [V.get(1), V.get(1)]
    vWOw = V.get(1)
    for i in range(3):
        p(f'''
        v_add_u32 {vt}, {64 * i}, {vLane}
        v_mul_u32_u24 {vo[i]}, 0x1556, {vt}
        v_lshrrev_b32 {vo[i]}, 16, {vo[i]}
        v_mul_u32_u24 {vu}, 12, {vo[i]}
        v_sub_u32 {vt}, {vt}, {vu}
        v_mul_u32_u24 {vo[i]}, 12288, {vo[i]}
        v_lshl_add_u32 {vo[i]}, {vt}, 4, {vo[i]}
        ''')
    for i in range(5):
        p(f'''
        v_add_u32 {vt}, {64 * i}, {vLane}
        v_mul_u32_u24 {voo[i]}, 0x199a, {vt}
        v_lshrrev_b32 {voo[i]}, 16, {voo[i]}
        v_mul_u32_u24 {vu}, 10, {voo[i]}
        v_sub_u32 {vt}, {vt}, {vu}
        v_mul_u32_u24 {voo[i]}, 1280, {voo[i]}
        v_lshl_add_u32 {voo[i]}, {vt}, 4, {voo[i]}
        ''')
    p(f'''
    v_lshrrev_b32 {vt}, 4, {vLane}
    v_bfe_u32 {vu}, {vLane}, 2, 2
    v_lshl_add_u32 {vTR[0]}, {vt}, 3, {vu}
    v_lshl_add_u32 {vTRo[0]}, {vt}, 2, {vu}
    v_mul_u32_u24 {vTR[0]}, 192, {vTR[0]}
    v_mul_u32_u24 {vTRo[0]}, 160, {vTRo[0]}
    v_and_b32 {vt}, 3, {vLane}
    v_lshl_add_u32 {vTR[0]}, {vt}, 3, {vTR[0]}
    s_mul_i32 {t2}, {sW}, 15360
    v_add_u32 {vTRo[0]}, {t2}, {vTRo[0]}
    v_add_u32 {vWOw}, {t2}, {vL16}
    v_lshl_add_u32 {vTRo[1]}, {vt}, 3, {vTRo[0]}
    v_lshl_add_u32 {vTRo[0]}, {vt}, 4, {vTRo[0]}
    s_lshl_b32 {t2}, {sW}, 5
    v_add_u32 {vTRv[0]}, {t2}, {vTR[0]}
    s_and_b32 {t1}, {sW}, 1
    s_lshl_b32 {t2}, {t1}, 5
    s_add_u32 {t2}, {t2}, 128
    v_add_u32 {vTRv[1]}, {t2}, {vTR[0]}
    s_lshr_b32 {t0}, {sW}, 1
    s_mul_i32 {t2}, {t0}, 30720
    s_mul_i32 {t3}, {t1}, 96
    s_add_u32 {t2}, {t2}, {t3}
    v_add_u32 {vTR[0]}, {t2}, {vTR[0]}
    v_add_u32 {vTR[1]}, {BUF}, {vTR[0]}
    s_waitcnt lgkmcnt(0)
    ''')
    sHJ, sWo = S.get(1), S.get(1)
    p(f'''
    s_mul_i32 {sHJ}, {sC}, 192
    s_lshr_b32 {t0}, {sC}, 3
    s_lshl_b32 {t0}, {t0}, 2
    s_add_u32 {t0}, {t0}, {sW}
    s_mul_i32 {sWo}, {t0}, {192 * 1280}
    s_and_b32 {t0}, {sC}, 7
    s_mul_i32 {t0}, {t0}, 160
    s_add_u32 {sWo}, {sWo}, {t0}
    ''')
    WBYTES = 640 * 6144 * 2

    def set_srd(kind):
        if kind == 'qk':
            p(f's_cmp_lt_u32 {sW}, 2\ns_cselect_b32 {srd[0]}, {ptr[0]}, {ptr[2]}\ns_cselect_b32 {srd[1]}, {ptr[1]}, {ptr[3]}')
        elif kind == 'v':
            p(f's_mov_b32 {srd[0]}, {ptr[4]}\ns_mov_b32 {srd[1]}, {ptr[5]}')
        else:
            p(f's_mov_b32 {srd[0]}, {ptr[6]}\ns_mov_b32 {srd[1]}, {ptr[7]}')
        p(f's_mov_b32 {srd[2]}, {WBYTES}\ns_mov_b32 {srd[3]}, 0x20000')

    chunks = [('qk', 0), ('qk', 1), ('qk', 2), ('qk', 3), ('v', 0), ('v', 1), ('o', 0), ('o', 1)]

    def issue(k):
        kind, ci = chunks[k]
        set_srd(kind)
        b = k & 1
        p(f's_mul_i32 {t0}, {sW}, 15360\ns_add_u32 {t0}, {t0}, {b * BUF}')
        if kind == 'qk':
            p(f's_and_b32 {t1}, {sW}, 1\ns_mul_i32 {t1}, {t1}, {80 * 12288}\ns_add_u32 {t1}, {t1}, {160 * ci * 12288}\ns_add_u32 {t1}, {t1}, {sHJ}')
        elif kind == 'v':
            p(f's_mul_i32 {t1}, {sW}, {80 * 12288}\ns_add_u32 {t1}, {t1}, {320 * ci * 12288}\ns_add_u32 {t1}, {t1}, {sHJ}')
        else:
            p(f's_add_u32 {t1}, {sWo}, {96 * ci * 1280}')
        for i in range(15):
            p(f's_add_u32 m0, {t0}, {i * 1024}')
            if kind == 'o':
                p(f's_add_u32 {t2}, {t1}, {(i // 5) * 32 * 1280}')
                p(f'buffer_load_dwordx4 {voo[i % 5]}, {srd}, {t2} offen lds')
            else:
                p(f's_add_u32 {t2}, {t1}, {(i // 3) * 16 * 12288}')
                p(f'buffer_load_dwordx4 {vo[i % 3]}, {srd}, {t2} offen lds')

    vtmp = V.get(60, 4)

    def per_wave(body, join=True):
        need = join
        join = p.uid('Lpw')
        for w in range(4):
            nxt = p.uid('Lpwn')
            if w < 3:
                p(f's_cmp_eq_u32 {sW}, {w}\ns_cbranch_scc0 {nxt}')
            body(w)
            if w < 3:
                if need:
                    p(f's_branch {join}')
                p.label(nxt)
        if need:
            p.label(join)

    def reads(k):
        kind, ci = chunks[k]
        b = k & 1
        if kind == 'qk':
            def body(w):
                q = (ci - w) & 3
                for kl in range(5):
                    for i in range(3):
                        for hf in range(2):
                            p(f'ds_read_b64_tr_b16 {WQK[i][5 * q + kl].sub(2 * hf, 2)}, {vTR[b]} offset:{(32 * kl + 4 * hf) * 192 + 32 * i}')
            per_wave(body)
        elif kind == 'v':
            if b:
                p(f'v_add_u32 {vTRv[0]}, {BUF}, {vTRv[0]}\nv_add_u32 {vTRv[1]}, {BUF}, {vTRv[1]}')

            def body(w):
                for kl in range(10):
                    sl = (10 * ci + kl - 5 * w) % 20
                    for hf in range(2):
                        p(f'ds_read_b64_tr_b16 {WV1[sl].sub(2 * hf, 2)}, {vTRv[0]} offset:{(32 * kl + 4 * hf) * 192}')
                        if sl < 10:
                            p(f'ds_read_b64_tr_b16 {WV2[sl].sub(2 * hf, 2)}, {vTRv[1]} offset:{(32 * kl + 4 * hf) * 192}')
            per_wave(body)
        else:
            if b:
                p(f'v_add_u32 {vTRo[0]}, {BUF}, {vTRo[0]}\nv_add_u32 {vTRo[1]}, {BUF}, {vTRo[1]}\nv_add_u32 {vWOw}, {BUF}, {vWOw}')
            for f in range(3):
                for t in range(5):
                    for hf in range(2):
                        col = 64 * (t >> 1) + 8 * (t & 1) if t < 4 else 128
                        p(f'ds_read_b64_tr_b16 {vtmp.sub((f * 5 + t) * 4 + 2 * hf, 2)}, {vTRo[t >> 2]} offset:{16 * TAU[f][hf] * 160 + col}')
        p('s_waitcnt lgkmcnt(0)\ns_barrier')
        if kind == 'o':
            for q in range(15):
                p(f'ds_write_b128 {vWOw}, {vtmp.sub(q * 4, 4)} offset:{q * 1024}')

    issue(0)
    for k in range(8):
        if k + 1 < 8:
            issue(k + 1)
            p('s_waitcnt vmcnt(15)')
        else:
            p('s_waitcnt vmcnt(0)')
        p('s_barrier')
        reads(k)
    p('s_waitcnt lgkmcnt(0)')
    V.free(vtmp, *vo, *voo, vt, vu, *vTR, *vTRo, *vTRv, vWOw)
    verify()

    vHi = V.get(1)
    vM = [V.get(1) for _ in range(4)]
    vQW = [V.get(1) for _ in range(2)]
    vWO = [V.get(1), V.get(1)]
    vUW, vVP, vRW, vRW2 = V.get(1), V.get(1), V.get(1), V.get(1)
    vYW, vZW, vPZ, vPO = V.get(1), V.get(1), V.get(1), V.get(1)
    vFa, vFthr, vF = V.get(1), V.get(1), V.get(1)
    m0r = V.get(2, 2)
    Kx = V.get(12, 2)
    Vx = V.get(16, 2)
    bias = V.get(4, 2)
    P1, P2 = V.get(4, 2), V.get(4, 2)
    sel, selh = V.get(4, 2), V.get(4, 2)
    vm = V.get(4, 2)
    ones = V.get(4, 2)
    one16 = V.get(4, 2)
    sT, sRed, sTo = S.get(1), S.get(1), S.get(1)
    bZ, bZW, bXown, bXpeer, bYW, bYR, bYR2, bK, bV1, bV2, bKM, bF, bOW, bOR = (S.get(1) for _ in range(14))
    sZ, sZ2, sZw, sZr, sX, sXr, sY, sYr, sO, sOr = (S.get(1) for _ in range(10))
    sK, sV0, sV1, sKM, sKMp = (S.get(1) for _ in range(5))
    sCexp = S.get(1)
    x0, x1, x2 = V.get(1), V.get(1), V.get(1)
    cbits = struct.unpack('<I', struct.pack('<f', (192 ** -0.5) * 1.4426950408889634))[0]
    p(f'''
    s_mov_b32 {sCexp}, {cbits:#x}
    v_add_u32 {vHi}, {MEM_LDS}, {vL16}
    v_lshlrev_b32 {vVP}, 3, {vLane}
    v_add_u32 {vVP}, {MEM_LDS + VP}, {vVP}
    s_mul_i32 {t0}, {sW}, 5120
    s_mul_i32 {t1}, {sG}, {4 * L.ZB_SLOT}
    s_add_u32 {t1}, {t1}, {L.ZB}
    s_add_u32 {bZ}, {t0}, {t1}
    ''')
    for q in range(4):
        p(f's_add_u32 {t0}, {sW}, {q}\ns_and_b32 {t0}, {t0}, 3\ns_mul_i32 {t0}, {t0}, 5120\nv_add_u32 {vM[q]}, {t0}, {vHi}')
    for i in range(2):
        o0 = (i >> 1) * 1024 + (i & 1) * 8
        o1 = ((3 + i) >> 1) * 1024 + ((3 + i) & 1) * 8
        p(f'''
        s_bitcmp1_b32 {sW}, 0
        s_mov_b32 {t1}, {o0 + QKX}
        s_cselect_b32 {t0}, {o1 + QKX}, {t1}
        s_lshr_b32 {t1}, {sW}, 1
        s_mul_i32 {t1}, {t1}, 3072
        s_add_u32 {t0}, {t0}, {t1}
        v_add_u32 {vQW[i]}, {t0}, {vHi}
        ''')
    p(f'''
    s_and_b32 {t3}, {sW}, 1
    s_lshl_b32 {t1}, {t3}, 10
    v_add_u32 {vUW}, {t1}, {vHi}
    s_mul_i32 {t0}, {sC}, 3072
    s_add_u32 {bXown}, {t0}, {L.XB}
    s_xor_b32 {t1}, {sC}, 1
    s_mul_i32 {t1}, {t1}, 3072
    s_add_u32 {bXpeer}, {t1}, {L.XB}
    ; o publish: c*3072 + min(w,2)*1024 (+8 for wave 3) ; o gather: head 4*(c>>3)+w -> 6144 bytes
    s_min_u32 {t1}, {sW}, 2
    s_lshl_b32 {t1}, {t1}, 10
    s_add_u32 {t1}, {t1}, {t0}
    s_cmp_eq_u32 {sW}, 3
    s_cselect_b32 {t2}, 8, 0
    s_add_u32 {t1}, {t1}, {t2}
    s_add_u32 {bOW}, {t1}, {L.OB}
    s_lshr_b32 {t1}, {sC}, 3
    s_lshl_b32 {t1}, {t1}, 2
    s_add_u32 {t1}, {t1}, {sW}
    s_mul_i32 {t1}, {t1}, 6144
    s_add_u32 {bOR}, {t1}, {L.OB}
    s_mul_i32 {t1}, {sW}, 15360
    v_add_u32 {vWO[0]}, {t1}, {vL16}
    v_add_u32 {vWO[1]}, {BUF}, {vWO[0]}
    v_lshrrev_b32 {x0}, 4, {vLane}
    v_and_b32 {x1}, 15, {vLane}
    s_lshl_b32 {t1}, {sW}, 8
    s_add_u32 {t1}, {t1}, {MEM_LDS + RX}
    v_lshl_add_u32 {vRW2}, {x1}, 4, {t1}
    v_lshl_add_u32 {vRW}, {x0}, 10, {vRW2}
    v_lshrrev_b32 {x2}, 5, {vLane}
    v_lshl_add_u32 {vRW2}, {x2}, 10, {vRW2}
    v_bfe_u32 {vF}, {vLane}, 4, 1
    v_lshl_add_u32 {vRW2}, {vF}, 3, {vRW2}
    v_lshlrev_b32 {vYW}, 10, {x2}
    v_lshl_add_u32 {vYW}, {x1}, 4, {vYW}
    v_lshl_add_u32 {vYW}, {vF}, 11, {vYW}
    s_and_b32 {t1}, {sC}, 7
    s_mul_i32 {t1}, {t1}, {10 * 1024}
    s_bfe_u32 {t2}, {sC}, 0x20003
    s_lshl_b32 {t2}, {t2}, 8
    s_add_u32 {t1}, {t1}, {t2}
    s_mul_i32 {t2}, {sG}, 81920
    s_add_u32 {t1}, {t1}, {t2}
    s_add_u32 {t1}, {t1}, {L.YB}
    s_and_b32 {t2}, {sW}, 1
    s_lshl_b32 {t2}, {t2}, 12
    s_add_u32 {bYW}, {t1}, {t2}
    s_lshl_b32 {t0}, {sW}, 5
    s_add_u32 {t0}, {t0}, {sL}
    s_lshl_b32 {t0}, {t0}, 1
    s_cmp_lt_u32 {t0}, 80
    s_cselect_b32 {sRed}, 1, 0
    s_cselect_b32 {t0}, {t0}, 0
    s_lshl_b32 {t1}, {t0}, 10
    s_mul_i32 {t2}, {sG}, 81920
    s_add_u32 {bYR}, {t1}, {t2}
    s_add_u32 {bYR}, {bYR}, {L.YL}
    s_sub_u32 {bYR2}, {t1}, {t2}
    s_add_u32 {bYR2}, {bYR2}, {L.YB + 81920}
    s_lshl_b32 {t1}, {t0}, 8
    s_mul_i32 {t2}, {sG}, {4 * L.ZB_SLOT}
    s_add_u32 {t1}, {t1}, {t2}
    s_add_u32 {bZW}, {t1}, {L.ZB}
    v_lshlrev_b32 {vZW}, 4, {x1}
    v_lshl_add_u32 {vZW}, {vF}, 3, {vZW}
    v_lshl_add_u32 {vZW}, {x2}, 8, {vZW}
    s_load_dwordx2 {ptr[0:2]}, {C.karg}, 8
    v_and_b32 {x2}, 7, {vLane}
    v_mul_u32_u24 {x2}, 1280, {x2}
    v_lshl_add_u32 {x2}, {x0}, 3, {x2}
    s_lshl_b32 {t1}, {t0}, 4
    v_add_u32 {x2}, {t1}, {x2}
    s_waitcnt lgkmcnt(0)
    s_mov_b32 {srd[0]}, {ptr[0]}
    s_mov_b32 {srd[1]}, {ptr[1]}
    s_mov_b32 {srd[2]}, 10240
    s_mov_b32 {srd[3]}, 0x20000
    buffer_load_dwordx2 {m0r}, {x2}, {srd}, 0 offen
    s_mul_i32 {t0}, {sC}, 6144
    s_lshl_b32 {t2}, {t3}, 10
    s_add_u32 {bK}, {t2}, {t0}
    s_lshl_b32 {t2}, {sW}, 10
    s_add_u32 {bV1}, {t2}, {t0}
    s_add_u32 {t2}, {t3}, 4
    s_lshl_b32 {t2}, {t2}, 10
    s_add_u32 {bV2}, {t2}, {t0}
    ; KM / VM publish: c*3072
    s_mul_i32 {t0}, {sC}, 3072
    s_add_u32 {bKM}, {t0}, {L.KM}
    s_lshl_b32 {bF}, {sC}, {L.FS}
    s_add_u32 {bF}, {bF}, {L.F_REC}
    s_mul_i32 {t0}, {sC}, 96
    v_and_b32 {vFa}, 3, {vLane}
    v_mul_u32_u24 {vFa}, 48, {vFa}
    v_min_u32 {vFa}, 95, {vFa}
    v_add_u32 {vFa}, {t0}, {vFa}
    v_lshrrev_b32 {vFa}, 6, {vFa}
    v_bfe_u32 {vF}, {vLane}, 2, 1
    v_add_u32 {vF}, 1, {vF}
    v_mul_u32_u24 {vF}, 96, {vF}
    v_add_u32 {vFa}, {vF}, {vFa}
    v_bfe_u32 {vF}, {vLane}, 3, 1
    v_lshl_add_u32 {vFa}, {vF}, 9, {vFa}
    v_lshlrev_b32 {vFa}, {L.FS}, {vFa}
    v_add_u32 {vFa}, {L.F_QKV}, {vFa}
    v_mul_u32_u24 {vFthr}, {DELTA}, {vF}
    v_sub_u32 {vFthr}, 1, {vFthr}
    v_min_u32 {vPZ}, 9, {vLane}
    v_lshlrev_b32 {vPZ}, 9, {vPZ}
    v_and_b32 {vPO}, 3, {vLane}
    v_min_u32 {x2}, 2, {vPO}
    v_sub_u32 {vPO}, {vPO}, {x2}
    v_lshlrev_b32 {vPO}, 3, {vPO}
    v_lshl_add_u32 {vPO}, {x2}, 10, {vPO}
    v_bfe_u32 {x2}, {vLane}, 2, 1
    v_mul_u32_u24 {x2}, 3072, {x2}
    v_add_u32 {vPO}, {vPO}, {x2}
    ; constants
    v_lshrrev_b32 {x2}, 5, {vLane}
    v_bfe_u32 {vF}, {vLane}, 3, 1
    v_cmp_eq_u32 vcc, {x2}, {vF}
    v_mov_b32 {x2}, 0xf149f2ca
    v_cndmask_b32 {bias[0]}, {x2}, 0, vcc
    ''')
    for r in range(1, 4):
        p(f'v_mov_b32 {bias[r]}, {bias[0]}')
    for r in range(4):
        p(f'v_mov_b32 {P1[r]}, 0\nv_mov_b32 {P2[r]}, 0\nv_mov_b32 {ones[r]}, -1\nv_mov_b32 {one16[r]}, 0x3f803f80\nv_mov_b32 {vm[r]}, 0')
        for sl, off in ((sel, 0), (selh, 8)):
            p(f'''
            v_mov_b32 {sl[r]}, 0
            v_mov_b32 {x2}, 0x3f80
            v_cmp_eq_u32 vcc, {2 * r + off}, {x1}
            v_cndmask_b32 {sl[r]}, {sl[r]}, {x2}, vcc
            v_mov_b32 {x2}, 0x3f800000
            v_cmp_eq_u32 vcc, {2 * r + 1 + off}, {x1}
            v_cndmask_b32 {sl[r]}, {sl[r]}, {x2}, vcc
            ''')
    p(f's_mov_b32 {sT}, 0')
    V.free(x0, x1, x2, vLane)
    S.free(ptr, sHJ, sWo, sL, sG)
    pr = Prof(p, S, 18, prof)
    if o['trace']:
        pr.trace = V.get(1)
        vTr = V.get(1)
        sTr = S.get(1)
        p(f'v_lshrrev_b32 {vTr}, 2, {vL16}\nv_mov_b32 {pr.trace}, 0')
        p(f's_lshl_b32 {sTr}, {sC}, 2\ns_add_u32 {sTr}, {sTr}, {sW}\ns_mul_i32 {sTr}, {sTr}, {96 * 256}\ns_add_u32 {sTr}, {sTr}, {L.TRACE}')

    def seg_offsets(tn):
        return f'''s_add_u32 {t0}, {sT}, {tn}
        s_mul_i32 {sV0}, {t0}, {L.SEG_F}
        s_add_u32 {sV0}, {sV0}, {L.VF[0]}
        s_cmp_lt_u32 {t0}, {L.NSEG}
        s_cselect_b32 {sV0}, {sV0}, {OOB}
        s_sub_u32 {t1}, {t0}, {DELTA}
        s_mul_i32 {sV1}, {t1}, {L.SEG_F}
        s_add_u32 {sV1}, {sV1}, {L.VF[1]}
        s_cmp_lt_u32 {t1}, {L.NSEG}
        s_cselect_b32 {sV1}, {sV1}, {OOB}
        s_add_u32 {t0}, {sV0}, {(L.KF[0] - L.VF[0]) & 0xffffffff}
        s_add_u32 {t1}, {sV1}, {(L.KF[1] - L.VF[1]) & 0xffffffff}
        s_cmp_lt_u32 {sW}, 2
        s_cselect_b32 {sK}, {t0}, {t1}
        s_add_u32 {sK}, {sK}, {bK}'''.split('\n')

    def slot_offsets(tn):
        return f'''
        s_add_u32 {sKM}, {sT}, {tn}
        s_and_b32 {t0}, {sKM}, 3
        s_mul_i32 {t1}, {t0}, {L.ZB_SLOT}
        s_add_u32 {sZ}, {t1}, {bZ}
        s_add_u32 {sZ2}, {sZ}, 4096
        s_add_u32 {sZw}, {t1}, {bZW}
        s_mul_i32 {sY}, {t0}, {L.YB_SLOT}
        s_xor_b32 {t1}, {t0}, 2
        s_mul_i32 {sYr}, {t1}, {L.YB_SLOT}
        s_add_u32 {t0}, {t0}, 3
        s_and_b32 {t0}, {t0}, 3
        s_mul_i32 {t1}, {t0}, {L.ZB_SLOT}
        s_add_u32 {sZr}, {t1}, {bZW}
        s_and_b32 {t0}, {sKM}, 1
        s_mul_i32 {sX}, {t0}, {L.XB_SLOT}
        s_xor_b32 {t0}, {t0}, 1
        s_mul_i32 {sXr}, {t0}, {L.XB_SLOT}
        s_mul_i32 {sKM}, {sKM}, {L.KM_STEP}
        '''

    def timeout():
        p(f's_add_u32 {sTo}, {sTo}, 1\ns_cmp_gt_u32 {sTo}, {TIMEOUT}\ns_cbranch_scc1 {C.fail}')

    def wait_flags(have_value, redo=()):
        lab, ok = p.uid('Lfl'), p.uid('Lflok')
        x = V.get(1)
        p(f's_mov_b32 {sTo}, 0\nv_min_i32 {x}, {L.NSEG}, {vFthr}')
        if have_value:
            p(f'v_cmp_ge_i32 vcc, {vF}, {x}\ns_cmp_eq_u64 vcc, -1\ns_cbranch_scc1 {ok}')
        p.label(lab)
        timeout()
        p(f'''
        buffer_load_dword {vF}, {vFa}, {ws}, 0 offen sc1
        s_waitcnt vmcnt(0)
        v_cmp_ge_i32 vcc, {vF}, {x}
        s_cmp_eq_u64 vcc, -1
        s_cbranch_scc0 {lab}
        ''')
        p('\n'.join(redo))
        p.label(ok)
        p(f'v_add_u32 {vFthr}, 1, {vFthr}')
        V.free(x)

    def k_loads():
        return [f'buffer_load_dwordx4 {Kx.sub(0, 4)}, {vL16}, {ws}, {sK} offen sc1',
                f'buffer_load_dwordx4 {Kx.sub(4, 4)}, {vL16}, {ws}, {sK} offen offset:2048 sc1',
                f's_add_u32 {t0}, {sK}, 4096\nbuffer_load_dwordx4 {Kx.sub(8, 4)}, {vL16}, {ws}, {t0} offen sc1']

    wait_flags(False)
    p('\n'.join(seg_offsets(0) + k_loads()))
    p(slot_offsets(0))
    p(f's_mov_b32 {sKMp}, {OOB}')
    p(f's_cmp_eq_u32 {C.sMode}, 0\ns_cbranch_scc0 L_rec_remote')
    YD = L.YL - L.YB
    assert L.XB_SLOT == L.OB_SLOT

    def step_loop(w, local):
        loc = '' if local else ' sc1'
        top = f'L_rec_top_{w}{"l" if local else "r"}'
        stubs = []
        p('s_waitcnt vmcnt(0)')
        if w < 2:
            skip = p.uid('Lz0')
            p(f"""
            s_cmp_eq_u32 {sRed}, 0
            s_cbranch_scc1 {skip}
            buffer_store_dwordx2 {m0r}, {vZW}, {ws}, {bZW} offen{loc}
            """)
            p.label(skip)
        p('s_barrier')
        pr.init()
        if prof:
            p(f's_sub_u32 {pr.acc[11]}, {pr.t[0]}, {C.tstart[0]}')
        p.label(top)

        def check4(acc, r, lab):
            return [f'v_max3_u32 {acc}, {r[0]}, {r[1]}, {r[2]}', f'v_max_u32 {acc}, {acc}, {r[3]}',
                    f'v_cmp_eq_u32 vcc, -1, {acc}', f's_cbranch_vccnz {lab}']

        def weave(ms, fs):
            fs = list(fs)
            for i, m in enumerate(ms):
                p(m)
                n = -(-len(fs) // (len(ms) - i))
                for _ in range(n):
                    p(fs.pop(0))

        z = V.get(20, 2)
        zc = V.get(1)
        ring = V.get(16, 2)
        qk = V.get(12, 2)
        pq = V.get(4, 2)

        def zload(i):
            return f'buffer_load_dwordx4 {z.sub(4 * i, 4)}, {vL16}, {ws}, {sZ if i < 4 else sZ2} offen offset:{1024 * (i & 3)} sc1'

        def qkm(s_, b):
            return [mf32(qk.sub(4 * i, 4), WQK[i][s_], b, 0 if s_ == 0 else qk.sub(4 * i, 4)) for i in range(3)]

        def mread(dst, s_):
            p(f'ds_read_b128 {dst}, {vM[s_ // 5]} offset:{1024 * (s_ % 5)}')
        def probe(va, so, regs, gap):
            lp, ok = p.uid('Lp'), p.uid('Lpok')
            ld = [f'buffer_load_dword {r}, {va}, {ws}, {so} offen sc1' for r in regs]
            out = [ld[0], f's_nop {gap}', ld[1], f'{lp}:']
            for q in range(2):
                out += ['s_waitcnt vmcnt(1)', f'v_cmp_eq_u32 vcc, -1, {regs[q]}', f's_cbranch_vccz {ok}', ld[q],
                        f's_add_u32 {sTo}, {sTo}, 1', f's_cmp_gt_u32 {sTo}, {TIMEOUT}', f's_cbranch_scc1 {C.fail}']
            return out + [f's_branch {lp}', f'{ok}:']
        p(f's_mov_b32 {sTo}, 0')
        if o['zdelay']:
            p(f's_sleep {o["zdelay"]}')
        if o['zprobe']:
            p('\n'.join(probe(vPZ, sZ, [ring[0], ring[1]], 15)))
        for i in range(5):
            p(zload(i))
            if o['zgap'] and i < 4:
                p(f's_nop {o["zgap"]}')
        for i in range(5):
            back, stub = p.uid('Lz'), p.uid('Lzs')
            p.label(back)
            p(f's_waitcnt vmcnt({4 - i})')
            p(f'ds_write_b128 {vM[0]}, {z.sub(4 * i, 4)} offset:{1024 * i}')
            chk = check4(zc, z.sub(4 * i, 4), stub)
            stubs.append((stub, [zload(k) for k in range(i, 5)], back))
            if i == 0:
                weave(qkm(0, z.sub(0, 4)), chk)
            else:
                p('\n'.join(chk))
                if i < o['own_pre']:
                    p('\n'.join(qkm(i, z.sub(4 * i, 4))))
        p('s_waitcnt lgkmcnt(0)\ns_barrier')
        pr.count(12, sTo)
        pr.stamp(0)
        kfirst = w < 2 and o['ksplit']
        vmem = k_loads() if kfirst and not o['nok'] else []
        n_k = len(vmem)
        vmem.append(f'buffer_load_dword {vF}, {vFa}, {ws}, 0 offen sc1')
        for q, sv in enumerate((sV0, sV1) if not o['nov'] else ()):
            vmem.append(f's_add_u32 {t0}, {sv}, {bV1}\nbuffer_load_dwordx4 {Vx.sub(8 * q, 4)}, {vL16}, {ws}, {t0} offen sc1')
            if w < 2:
                vmem.append(f's_add_u32 {t0}, {sv}, {bV2}\nbuffer_load_dwordx4 {Vx.sub(8 * q + 4, 4)}, {vL16}, {ws}, {t0} offen sc1')
        if w < 2:
            for i in range(3):
                vmem.append(f's_add_u32 {t0}, {bXown}, {sXr}\ns_add_u32 {t0}, {t0}, {(L.OB - L.XB) * w}\n'
                            f'buffer_store_dwordx4 {ones}, {vL16}, {ws}, {t0} offen offset:{1024 * i}{loc}')
        else:
            for cp in range(2):
                sc_ = loc if cp else ' sc1'
                vmem.append(f's_add_u32 {t0}, {bYW}, {sYr}\ns_add_u32 {t0}, {t0}, {YD * cp}\nbuffer_store_dwordx4 {ones}, {vYW}, {ws}, {t0} offen{sc_}')
                if w == 2:
                    vmem.append(f's_add_u32 {t0}, {t0}, 8192\ns_mov_b32 exec_lo, 0xffff\ns_mov_b32 exec_hi, 0xffff\n'
                                f'buffer_store_dwordx4 {ones}, {vYW}, {ws}, {t0} offen{sc_}\ns_mov_b64 exec, -1')
        pubqk = w == 3 and o['pub'] == 'qk'
        if pubqk:
            pk = [z.sub(4 * i, 4) for i in range(5)] + [pq]
            for i in range(6):
                vmem.append((f's_add_u32 {t0}, {sKMp}, {L.VM - L.KM}\n' if i == 3 else '') +
                            f'buffer_store_dwordx4 {pk[i]}, {vL16}, {ws}, {sKMp if i < 3 else t0} offen offset:{1024 * (i % 3)} sc1')
        n_after_f = len(vmem) - 1 - n_k
        so = seg_offsets(1)
        vmem += ['\n'.join(so[0:5]), '\n'.join(so[5:10]), '\n'.join(so[10:15])]
        PQ = 3
        lq = []

        def lwait(tag):
            p(f's_waitcnt lgkmcnt({len(lq) - 1 - lq.index(tag)})')

        def pub_reads(pk):
            for i in range(3):
                p(f'ds_read_b128 {pk[i]}, {vHi} offset:{QKX + 3072 + 1024 * i}')
            for i in range(6):
                p(f'ds_read_b64 {pk[3 + (i >> 1)].sub(2 * (i & 1), 2)}, {vVP} offset:{512 * i}')
        for k in range(5, 5 + PQ):
            mread(ring.sub(4 * (k & 3), 4), k)
            lq.append(k)
        for k in range(o['own_pre'], 20):
            if k >= 5:
                if k + PQ < 20:
                    mread(ring.sub(4 * ((k + PQ) & 3), 4), k + PQ)
                    lq.append(k + PQ)
                lwait(k)
            fs = vmem.pop(0).split('\n') if vmem and not (f' {sKMp} ' in vmem[0] and k < 9) else []
            weave(qkm(k, z.sub(4 * k, 4) if k < 5 else ring.sub(4 * (k & 3), 4)), fs)
            if k == 5 and pubqk:
                pub_reads(pk)
                lq += ['p'] * 9
        assert not vmem
        V.free(pq, z, zc)
        qb = V.get(6, 2)
        for i in range(3):
            p(cvt2(qb.sub(2 * i, 2), qk.sub(4 * i, 4)))
            p(f'ds_write_b64 {vQW[i & 1]}, {qb.sub(2 * i, 2)} offset:{1024 * (i >> 1)}')
        p(f's_add_u32 {t1}, {sX}, {bXown}\ns_add_u32 {t2}, {sX}, {bXpeer}')
        p('s_waitcnt lgkmcnt(0)\ns_barrier')
        V.free(qb, qk)
        pr.stamp(1)
        st, su = V.get(4, 2), V.get(4, 2)
        qf, kf = V.get(12, 2), V.get(12, 2)
        for i in range(3):
            p(f'ds_read_b128 {qf.sub(4 * i, 4)}, {vHi} offset:{QKX + 1024 * i}')
        for i in range(3):
            p(f'ds_read_b128 {kf.sub(4 * i, 4)}, {vHi} offset:{QKX + 3072 + 1024 * i}')
        PD = 3
        for k in range(PD):
            mread(ring.sub(4 * k, 4), k)
        if kfirst:
            p(f's_waitcnt vmcnt({n_after_f + 1})')
        for i in range(3):
            p(f's_waitcnt lgkmcnt({5 + PD - i})')
            p(mf32(su, Kx.sub(4 * i, 4), qf.sub(4 * i, 4), 0 if i == 0 else su))
        for i in range(3):
            p(f's_waitcnt lgkmcnt({2 + PD - i})')
            p(mf32(st, kf.sub(4 * i, 4), qf.sub(4 * i, 4), bias if i == 0 else st))
            if i == 1:
                m = '0x00ff00ff' if w < 2 else '0xff00ff00'
                p(f's_mov_b32 exec_lo, {m}\ns_mov_b32 exec_hi, {m}')
        p(f'buffer_store_dwordx4 {su}, {vL16}, {ws}, {t1} offen offset:{1024 * (w & 1)}{loc}')
        p(f'ds_write_b128 {vUW}, {su} offset:{UX}\ns_mov_b64 exec, -1')
        V.free(qf, kf, su)
        pr.stamp(2)
        xs = V.get(12, 2)
        va = V.get(8, 2)
        uo = V.get(8, 2)
        vo2 = V.get(4, 2)

        def xload(i):
            return f'buffer_load_dwordx4 {xs.sub(4 * i, 4)}, {vL16}, {ws}, {t2} offen offset:{1024 * i} sc1'

        lq[:] = ['r0', 'r1', 'r2', 'U']
        xl = {o['xpoll_at'] + o['xstep'] * i: xload(i) for i in range(3)}
        for k in range(20):
            if k + PD < 20:
                mread(ring.sub(4 * ((k + PD) & 3), 4), k + PD)
                lq.append(f'r{k + PD}')
            lwait(f'r{k}')
            p(mf32(va.sub(0, 4), ring.sub(4 * (k & 3), 4), WV1[k], 0 if k == 0 else va.sub(0, 4)))
            if k < 10:
                p(mf32(va.sub(4, 4), ring.sub(4 * (k & 3), 4), WV2[k], 0 if k == 0 else va.sub(4, 4)))
            if k == 0 and w == 3:
                p(f'buffer_store_dwordx4 {st}, {vL16}, {ws}, {t1} offen offset:2048{loc}')
            if k == 4:
                p('s_barrier')
                p(f'ds_read_b128 {uo.sub(0, 4)}, {vHi} offset:{UX}\nds_read_b128 {uo.sub(4, 4)}, {vHi} offset:{UX + 1024}')
                lq += ['u0', 'u1']
            if k == 12 and w >= 2:
                p(f'ds_write_b128 {vUW}, {va.sub(4, 4)} offset:{VX}')
                lq.append('V')
            if k == 17:
                p('s_barrier')
                if w < 2:
                    p(f'ds_read_b128 {vo2}, {vUW} offset:{VX}')
                    lq.append('v')
            if k in xl:
                p(xl.pop(k))
            if k == 3:
                p(f's_waitcnt vmcnt({n_after_f + (2 if w == 3 else 1)})')
                wait_flags(True)
        assert not xl
        V.free(ring)
        fin = p.uid('Lfin')
        p(f's_cmp_eq_u32 {sT}, {NSTEP - 1}\ns_cbranch_scc1 {fin}')
        fin_regs = (va, vo2)
        pr.stamp(3)
        sc = V.get(12, 2)
        mx, m2, m3 = V.get(1), V.get(1), V.get(1)
        lf, lfs, lfok = p.uid('Lf'), p.uid('Lfs'), p.uid('Lfok')
        p(f's_mov_b32 {sTo}, 0')
        p.label(lf)
        for i in range(3):
            p(f's_waitcnt vmcnt({2 - i})')
            for r in range(4):
                p(f'v_add_f32 {sc[4 * i + r]}, {uo[4 * i + r] if i < 2 else st[r]}, {xs[4 * i + r]}')
            if i == 1:
                p(f'v_maximum3_f32 {mx}, {sc[0]}, {sc[1]}, {sc[2]}\nv_maximum3_f32 {m2}, {sc[3]}, {sc[4]}, {sc[5]}')
                p(f'v_maximum3_f32 {mx}, {mx}, {sc[6]}, {sc[7]}')
        p(f"""
        v_maximum3_f32 {m2}, {m2}, {sc[8]}, {sc[9]}
        v_maximum3_f32 {mx}, {mx}, {sc[10]}, {sc[11]}
        v_maximum3_f32 {mx}, {mx}, {m2}, {m2}
        v_cmp_u_f32 vcc, {mx}, {mx}
        v_mov_b32 {m2}, {mx}
        s_cbranch_vccnz {lfs}
        """)
        p.label(lfok)
        q_ = Prog()
        maxchain(q_, m3, xs)
        q_(f'v_cmp_eq_u32 vcc, -1, {m3}\ns_cbranch_vccz {lfok}')
        stubs.append((lfs, [x.text for x in q_.ins] + [xload(i) for i in range(3)], lf))
        V.free(xs, st, uo)
        pr.count(13, sTo)
        pr.stamp(4)
        p(f"""
        v_permlane32_swap_b32 {mx}, {m2}
        v_max_f32 {mx}, {mx}, {m2}
        v_mov_b32 {m2}, {mx}
        v_cvt_pk_bf16_f32 {vm[0]}, {va[0]}, {va[1]}
        v_cvt_pk_bf16_f32 {vm[1]}, {va[2]}, {va[3]}
        v_permlane16_swap_b32 {mx}, {m2}
        v_max_f32 {mx}, {mx}, {m2}
        v_mul_f32 {mx}, {sCexp}, {mx}
        """)
        if pubqk:
            p(f's_mov_b64 exec, 1\nv_mov_b32 {m3}, {sT}\nbuffer_store_dword {m3}, off, {ws}, {bF} sc1\ns_mov_b64 exec, -1')
        for r in range(12):
            p(f'v_fma_f32 {sc[r]}, {sc[r]}, {sCexp}, -{mx}')
        for r in range(8):
            p(f'v_exp_f32 {sc[r]}, {sc[r]}')
        Pm = V.get(2, 2)
        nt = 2 if w < 2 else 1
        oa = V.get(8, 2)
        ls = V.get(4, 2)
        p('s_mov_b32 exec_lo, 0x00ff00ff\ns_mov_b32 exec_hi, 0x00ff00ff')
        for r in range(4):
            p(f'v_cvt_pk_bf16_f32 {P1[r]}, {sc[2 * r]}, {sc[2 * r + 1]}')
        p('s_not_b64 exec, exec')
        for r in range(4):
            p(f'v_cvt_pk_bf16_f32 {P2[r]}, {sc[2 * r]}, {sc[2 * r + 1]}')
        p('s_mov_b64 exec, -1')
        m1 = [mf32(ls, one16, P1, 0)] + [mf32(oa.sub(4 * i, 4), Vx.sub(4 * i, 4), P1, 0) for i in range(nt)]
        m2_ = [mf32(ls, one16, P2, ls)] + [mf32(oa.sub(4 * i, 4), Vx.sub(8 + 4 * i, 4), P2, oa.sub(4 * i, 4)) for i in range(nt)]
        m3_ = [mf16(ls, one16.sub(0, 2), Pm, ls)] + [mf16(oa.sub(4 * i, 4), vm.sub(2 * i, 2), Pm, oa.sub(4 * i, 4)) for i in range(nt)]
        f1 = [f'v_exp_f32 {sc[r]}, {sc[r]}' for r in range(8, 12)]
        f2 = cvt2(Pm, sc.sub(8, 4)).split('\n')
        if w < 2:
            f2 += ['s_waitcnt lgkmcnt(0)'] + [f'v_add_f32 {va[4 + r]}, {va[4 + r]}, {vo2[r]}' for r in range(4)]
            f2 += cvt2(vm.sub(2, 2), va.sub(4, 4)).split('\n')
        weave(m1, f1)
        weave(m2_, f2)
        kl = k_loads()
        weave(m3_, [x for y_ in kl[:o['k_early']] for x in y_.split('\n')] + [f's_add_u32 {t0}, {sX}, {bOW}', f's_add_u32 {t2}, {sX}, {bOR}', f's_add_u32 {t3}, {t2}, 4096', f's_mov_b32 {sTo}, 0'])
        V.free(va, vo2)
        p(f'v_rcp_f32 {m2}, {ls[0]}')
        ob = V.get(4, 2)
        for i in range(nt):
            for r in range(4):
                p(f'v_mul_f32 {oa[4 * i + r]}, {oa[4 * i + r]}, {m2}')
            p(cvt2(ob.sub(2 * i, 2), oa.sub(4 * i, 4)))
        if w < 2:
            p(f'buffer_store_dwordx4 {ob}, {vL16}, {ws}, {t0} offen{loc}')
        else:
            p(f'buffer_store_dwordx2 {ob.sub(0, 2)}, {vL16}, {ws}, {t0} offen{loc}')
        V.free(sc, mx, m2, m3, Pm, oa, ob, ls)
        pr.stamp(5)
        of = V.get(24, 2)
        ya = V.get(20, 2)
        oc, oc2 = V.get(1), V.get(1)
        NR = o['wring']
        slots = [Vx.sub(4 * i, 4) for i in range(4)]
        wr = V.get(4 * (NR - 4), 2)
        slots += [wr.sub(4 * i, 4) for i in range(NR - 4)]
        def vm_out():
            p(f'ds_write_b64 {vVP}, {vm.sub(0, 2)} offset:{512 * w}')
            if w < 2:
                p(f'ds_write_b64 {vVP}, {vm.sub(2, 2)} offset:{512 * (4 + w)}')
        vm_out()

        def wread(q):
            return f'ds_read_b128 {slots[q % NR]}, {vWO[q // 15]} offset:{1024 * (q % 15)}'

        def oload(i):
            return f'buffer_load_dwordx4 {of.sub(4 * i, 4)}, {vL16}, {ws}, {t2 if i < 4 else t3} offen offset:{1024 * (i & 3)} sc1'
        def oprobe():
            return probe(vPO, t2, [oc, oc2], 15) if o['oprobe'] else []
        if o['odelay']:
            p(f's_sleep {o["odelay"]}')
        if o['oprobe'] == 2:
            p('\n'.join(oprobe()))
        wq = list(range(NR))
        for i in range(6):
            p(oload(i))
            for _ in range(2):
                if wq:
                    p(wread(wq.pop(0)))
            if o['ogap'] and i < 5:
                p(f's_nop {o["ogap"]}')
        assert not wq
        p('s_waitcnt lgkmcnt(0)')
        yb = V.get(10, 2) if False else None
        for k in range(6):
            if k == 0:
                back, stub = p.uid('Lo'), p.uid('Los')
                p.label(back)
                p('s_waitcnt vmcnt(5)')
                p('\n'.join(check4(oc, of.sub(0, 4), stub)))
                stubs.append((stub, oprobe() + [oload(i) for i in range(6)], back))
                pr.stamp(6)
            for t in range(5):
                q = 5 * k + t
                if q >= NR and (q - NR) % 2 == 0:
                    p(f's_waitcnt lgkmcnt({max(0, min(q + NR - 1, 29) - (q + 1))})')
                p(mf32(ya.sub(4 * t, 4), slots[q % NR], of.sub(4 * k, 4), 0 if k == 0 else ya.sub(4 * t, 4)))
                if q + NR < 30:
                    p(wread(q + NR))
                if k < 5:
                    if t == 1:
                        back, stub = p.uid('Lo'), p.uid('Los')
                        chk = check4(oc, of.sub(4 * k + 4, 4), stub)
                        redo = oprobe() + [oload(i) for i in range(k + 1, 6)] + [f's_waitcnt vmcnt({4 - k})'] + chk[:3]
                        stubs.append((stub, redo, back))
                        p(f's_waitcnt vmcnt({4 - k})\n{chk[0]}')
                    if t == 2:
                        p(chk[1])
                    if t == 3:
                        p(chk[2])
                    if t == 4:
                        p.label(back)
                        p(chk[3])
                elif t < 3 - o['k_early'] and not o['nok'] and not kfirst:
                    p(kl[o['k_early'] + t])
        pr.count(14, sTo)
        V.free(of, oc, oc2, wr)
        yb = V.get(10, 2)
        for t in range(5):
            p(cvt2(yb.sub(2 * t, 2), ya.sub(4 * t, 4)))
            if t == 1:
                p(f'ds_write_b128 {vRW}, {yb.sub(0, 4)}')
            if t == 3:
                p(f'ds_write_b128 {vRW}, {yb.sub(4, 4)} offset:4096')
        p(f'ds_write_b64 {vRW2}, {yb.sub(8, 2)} offset:8192')
        p(f's_add_u32 {t0}, {sY}, {bYW}\ns_add_u32 {t1}, {t0}, 8192\ns_add_u32 {t2}, {t0}, {YD}\ns_add_u32 {t3}, {t1}, {YD}')
        p('s_waitcnt lgkmcnt(0)\ns_barrier')
        V.free(ya, yb)
        pr.stamp(7)
        if w >= 2:
            nr = 6 if w == 2 else 4
            rf = V.get(24, 2)
            ra = V.get(12, 2)
            yc = V.get(8, 2)
            for i in range(nr):
                p(f'ds_read_b128 {rf.sub(4 * i, 4)}, {vHi} offset:{RX + 1024 * (4 * (w - 2) + i if i < 4 else 4 + i)}')
            for i in range(nr):
                a = ra.sub(4 * (i >> 1), 4)
                p(f's_waitcnt lgkmcnt({nr - 1 - i})')
                p(mf32(a, selh if i & 1 else sel, rf.sub(4 * i, 4), a if i & 1 else 0))
                if i == 3 + (nr - 4) // 2:
                    p(cvt2(yc.sub(0, 2), ra.sub(0, 4)))
            p(cvt2(yc.sub(2, 2), ra.sub(4, 4)))
            p(f'v_permlane16_swap_b32 {yc[0]}, {yc[2]}\nv_permlane16_swap_b32 {yc[1]}, {yc[3]}')
            p(f'buffer_store_dwordx4 {yc.sub(0, 4)}, {vYW}, {ws}, {t0} offen sc1')
            if w == 2:
                p(cvt2(yc.sub(4, 2), ra.sub(8, 4)))
                p(cvt2(yc.sub(6, 2), ra.sub(8, 4)))
                p(f'v_permlane16_swap_b32 {yc[4]}, {yc[6]}\nv_permlane16_swap_b32 {yc[5]}, {yc[7]}')
                p(f's_mov_b32 exec_lo, 0xffff\ns_mov_b32 exec_hi, 0xffff\nbuffer_store_dwordx4 {yc.sub(4, 4)}, {vYW}, {ws}, {t1} offen sc1')
                p(f'buffer_store_dwordx4 {yc.sub(4, 4)}, {vYW}, {ws}, {t3} offen{loc}\ns_mov_b64 exec, -1')
            p(f'buffer_store_dwordx4 {yc.sub(0, 4)}, {vYW}, {ws}, {t2} offen{loc}')
            V.free(rf, ra, yc)
        pr.stamp(8)
        p(f's_add_u32 {sKMp}, {sKM}, {bKM}')
        if w == 3 and o['pub'] == 'y':
            pk_ = V.get(24, 2)
            pk = [pk_.sub(4 * i, 4) for i in range(6)]
            pub_reads(pk)
            if o['pubdelay']:
                p(f's_sleep {o["pubdelay"]}')
            p(f's_add_u32 {t0}, {sKMp}, {L.VM - L.KM}\ns_waitcnt lgkmcnt(0)')
            for i in range(6):
                p(f'buffer_store_dwordx4 {pk[i]}, {vL16}, {ws}, {sKMp if i < 3 else t0} offen offset:{1024 * (i % 3)} sc1')
            p(f's_add_u32 {t0}, {sT}, 1\ns_mov_b64 exec, 1\nv_mov_b32 {pk_[0]}, {t0}\ns_waitcnt vmcnt(0)')
            p(f'buffer_store_dword {pk_[0]}, off, {ws}, {bF} sc1\ns_mov_b64 exec, -1')
            V.free(pk_)
        p(f's_add_u32 {t2}, {sY}, {bYR}\ns_add_u32 {t3}, {sY}, {bYR2}')
        p(slot_offsets(1))
        if w < 2:
            nored = p.uid('Lnr')
            if w == 1:
                p(f's_cmp_eq_u32 {sRed}, 0\ns_cbranch_scc1 {nored}')
            NS = o['ysets']
            yl_ = V.get(8, 2)
            yr = [V.get(8, 2) for _ in range(NS)]
            ra, rb = V.get(4, 2), V.get(4, 2)
            x0 = V.get(2, 2)

            def yload(dst, so):
                return [f'buffer_load_dwordx4 {dst.sub(4 * i, 4)}, {vL16}, {ws}, {so} offen offset:{1024 * i} sc1' for i in range(2)]

            def ysum(d, src, c):
                p(mf32(d, sel, src.sub(0, 4), c))
                p(f'v_max3_u32 {x0[0]}, {src[0]}, {src[1]}, {src[2]}\nv_max3_u32 {x0[1]}, {src[3]}, {src[4]}, {src[5]}')
                p(mf32(d, selh, src.sub(4, 4), d))
                p(f'v_max3_u32 {x0[0]}, {x0[0]}, {src[6]}, {src[7]}\nv_max_u32 {x0[0]}, {x0[0]}, {x0[1]}\nv_cmp_eq_u32 vcc, -1, {x0[0]}')
            if o['ydelay']:
                p(f's_sleep {o["ydelay"]}')
            lj, ljs, ydone = p.uid('Lj'), p.uid('Ljs'), p.uid('Lyd')
            p(f's_mov_b32 {sTo}, 0\n' + '\n'.join(yload(yl_, t2)))
            for q in range(NS):
                if q:
                    p(f's_sleep {o["ygap"]}')
                p('\n'.join(yload(yr[q], t3)))
            p(f's_waitcnt vmcnt({2 * NS})')
            p.label(lj)
            ysum(rb, yl_, 0)
            p(f's_cbranch_vccnz {ljs}')
            stubs.append((ljs, yload(yl_, t2) + ['s_waitcnt vmcnt(0)'], lj))
            ly = p.uid('Ly')
            p.label(ly)
            for q in range(NS):
                p(f's_waitcnt vmcnt({2 * (NS - 1)})')
                ysum(ra, yr[q], rb)
                p(f's_cbranch_vccz {ydone}')
                p('\n'.join(yload(yr[q], t3)))
                timeout()
            p(f's_branch {ly}')
            p.label(ydone)
            p(cvt2(x0, ra))
            ov, nov = p.uid('Lov'), p.uid('Lnov')
            p(f's_cmp_eq_u32 {sT}, {DELTA - 1}\ns_cbranch_scc1 {ov}')
            p.label(nov)
            stubs.append((ov, f"""s_mov_b32 exec_lo, 0xff00ff00
                s_mov_b32 exec_hi, 0xff00ff00
                v_mov_b32 {x0[0]}, {m0r[0]}
                v_mov_b32 {x0[1]}, {m0r[1]}
                s_mov_b64 exec, -1""".split('\n'), nov))
            p(f"""
            buffer_store_dwordx2 {x0}, {vZW}, {ws}, {sZw} offen{loc}
            buffer_store_dwordx2 {ones.sub(0, 2)}, {vZW}, {ws}, {sZr} offen{loc}
            """)
            pr.count(15, sTo)
            V.free(yl_, *yr, ra, rb, x0)
            p.label(nored)
        pr.stamp(9)
        p(f's_add_u32 {sT}, {sT}, 1\ns_barrier')
        pr.stamp(10)
        if o['trace']:
            p(f's_memrealtime {pr.t}\ns_waitcnt lgkmcnt(0)\nv_writelane_b32 {pr.trace}, {pr.t[0]}, 11')
            p(f'buffer_store_dword {pr.trace}, {vTr}, {ws}, {sTr} offen\ns_add_u32 {sTr}, {sTr}, 256')
        p(f's_branch {top}')
        p.label(fin)
        va, vo2 = fin_regs
        p('s_waitcnt lgkmcnt(0)')
        p(cvt2(vm.sub(0, 2), va.sub(0, 4)))
        if w < 2:
            for r in range(4):
                p(f'v_add_f32 {va[4 + r]}, {va[4 + r]}, {vo2[r]}')
            p(cvt2(vm.sub(2, 2), va.sub(4, 4)))
        vm_out()
        p('s_waitcnt lgkmcnt(0)\ns_barrier')
        x0, x1 = V.get(1), V.get(1)
        if w == 3:
            pk = [Vx.sub(4 * i, 4) for i in range(4)] + [Kx.sub(4 * i, 4) for i in range(2)]
            p('s_waitcnt vmcnt(0)')
            pub_reads(pk)
            p(f's_add_u32 {t1}, {sKM}, {bKM}\ns_add_u32 {t0}, {t1}, {L.VM - L.KM}\ns_waitcnt lgkmcnt(0)')
            for i in range(6):
                p(f'buffer_store_dwordx4 {pk[i]}, {vL16}, {ws}, {t1 if i < 3 else t0} offen offset:{1024 * (i % 3)} sc1')
            p(f's_mov_b64 exec, 1\nv_mov_b32 {x0}, {NSTEP}\ns_waitcnt vmcnt(0)\nbuffer_store_dword {x0}, off, {ws}, {bF} sc1\ns_mov_b64 exec, -1')
        if prof:
            p(f's_lshl_b32 {t0}, {sC}, 2\ns_add_u32 {t0}, {t0}, {sW}\ns_lshl_b32 {t0}, {t0}, 8\ns_add_u32 {t0}, {t0}, {L.PROF}')
            p(f's_memtime {pr.t}\ns_waitcnt lgkmcnt(0)\ns_sub_u32 {pr.acc[16]}, {pr.t[0]}, {C.tstart[0]}')
            p(f's_memrealtime {pr.t}\ns_waitcnt lgkmcnt(0)\ns_sub_u32 {pr.acc[17]}, {pr.t[0]}, {C.rstart[0]}')
            pr.dump(ws, x0, x1, t0)
        p('s_endpgm')
        V.free(x0, x1)
        for stub, code, back in stubs:
            p.label(stub)
            p('\n'.join(code))
            timeout()
            p(f's_branch {back}')

    per_wave(lambda w: step_loop(w, True), join=False)
    p.label('L_rec_remote')
    per_wave(lambda w: step_loop(w, False), join=False)
    return V.high, A.high
```

```python
from common import *
import layout as L
from rec import cvt2, TIMEOUT
from gemm import srd_from


def half_sum(p, x, y):
    for n in (8, 4, 2, 1):
        p(f'v_add_f32_dpp {x}, {x}, {x} row_ror:{n} row_mask:0xf bank_mask:0xf')
    p(f'v_mov_b32 {y}, {x}\nv_permlane16_swap_b32 {x}, {y}\nv_add_f32 {x}, {x}, {y}')


def layer_norm(p, X, D, out, a, b, sInv):
    p(f'v_add_f32 {a}, {X[0]}, {X[1]}\nv_add_f32 {b}, {X[2]}, {X[3]}')
    for i in range(4, 20, 2):
        p(f'v_add_f32 {a}, {a}, {X[i]}\nv_add_f32 {b}, {b}, {X[i + 1]}')
    p(f'v_add_f32 {a}, {a}, {b}')
    half_sum(p, a, b)
    p(f'v_mul_f32 {a}, {sInv}, {a}')
    for i in range(20):
        p(f'v_sub_f32 {D[i]}, {X[i]}, {a}')
    p(f'v_mul_f32 {a}, {D[0]}, {D[0]}\nv_mul_f32 {b}, {D[1]}, {D[1]}')
    for i in range(2, 20, 2):
        p(f'v_fmac_f32 {a}, {D[i]}, {D[i]}\nv_fmac_f32 {b}, {D[i + 1]}, {D[i + 1]}')
    p(f'v_add_f32 {a}, {a}, {b}')
    half_sum(p, a, b)
    p(f'v_mov_b32 {b}, 0x3727c5ac\nv_fma_f32 {a}, {a}, {sInv}, {b}\nv_rsq_f32 {a}, {a}')
    for i in range(20):
        p(f'v_mul_f32 {D[i]}, {D[i]}, {a}')
    for i in range(10):
        p(f'v_cvt_pk_bf16_f32 {out[i]}, {D[2 * i]}, {D[2 * i + 1]}')


INV640 = 0x3acccccd


def gen_r(p, C, verify, kind):
    S = C.S
    V = Alloc('v', 1, 256)
    ws, sW = C.srd_ws, C.sW
    verify()
    t = [S.get(1) for _ in range(5)]
    sTo, sL, sS, sS1, sId, sInv, sFlag, sRes = (S.get(1) for _ in range(8))
    vLane, v4, v2, vP, vF, vFa, a, b = (V.get(1) for _ in range(8))
    X, ob = V.get(20, 2), V.get(10, 2)
    np_ = 4 if kind == 1 else 1
    D = [V.get(20, 2) for _ in range(np_)]
    nprod = 20 if kind == 1 else 5
    p(f'''
    v_and_b32 {vLane}, 63, v0
    s_lshr_b32 {sL}, {C.sRole}, 2
    s_and_b32 {sId}, {C.sRole}, 3
    s_lshl_b32 {sId}, {sId}, 2
    s_add_u32 {sId}, {sId}, {sW}
    s_mov_b32 {sInv}, {INV640:#x}
    s_lshl_b32 {t[0]}, {sL}, 6
    s_lshr_b32 {sFlag}, {sId}, 2
    s_add_u32 {sFlag}, {t[0]}, {sFlag}
    s_lshl_b32 {sFlag}, {sFlag}, {L.FS}
    s_add_u32 {sFlag}, {sFlag}, {L.F_R1 if kind == 1 else L.F_R2}
    s_lshl_b32 {t[0]}, {sL}, 7
    v_min_u32 {vFa}, {nprod - 1}, {vLane}
    v_add_u32 {vFa}, {t[0]}, {vFa}
    v_lshlrev_b32 {vFa}, {L.FS}, {vFa}
    v_add_u32 {vFa}, {L.F_O if kind == 1 else L.F_D}, {vFa}
    s_mul_i32 {sRes}, {sL}, {L.XR[1] - L.XR[0]}
    s_add_u32 {sRes}, {sRes}, {L.XR[0] if kind == 1 else L.XA}
    v_lshrrev_b32 {a}, 5, {vLane}
    s_lshl_b32 {t[0]}, {sId}, 1
    v_add_u32 {a}, {t[0]}, {a}
    v_and_b32 {b}, 31, {vLane}
    v_mul_u32_u24 {v4}, 2560, {a}
    v_lshl_add_u32 {v4}, {b}, 4, {v4}
    v_lshrrev_b32 {v2}, 1, {v4}
    v_lshrrev_b32 {vP}, 3, {b}
    v_lshlrev_b32 {vP}, 1, {vP}
    v_lshrrev_b32 {vF}, 4, {a}
    v_add_u32 {vP}, {vP}, {vF}
    v_lshlrev_b32 {vP}, 1, {vP}
    v_and_b32 {vF}, 1, {b}
    v_add_u32 {vP}, {vP}, {vF}
    v_lshlrev_b32 {vP}, 4, {vP}
    v_and_b32 {vF}, 15, {a}
    v_add_u32 {vP}, {vP}, {vF}
    v_lshlrev_b32 {vP}, 2, {vP}
    v_bfe_u32 {vF}, {b}, 1, 2
    v_add_u32 {vP}, {vP}, {vF}
    v_lshlrev_b32 {vP}, 4, {vP}
    s_mov_b32 {sS}, 0
    ''')
    mk = Marks(p, C, V, C.base)
    top, spin = p.uid('Lr'), p.uid('Lrs')
    p.label(top)
    p(f'''
    s_add_u32 {sS1}, {sS}, 1
    s_mul_i32 {t[0]}, {sS}, {L.SEG_X4}
    s_add_u32 {t[3]}, {t[0]}, {sRes}
    s_mul_i32 {t[1]}, {sS}, {L.SEG_PO if kind == 1 else L.SEG_X4}
    s_add_u32 {t[1]}, {t[1]}, {L.PO if kind == 1 else L.PD}
    s_mov_b32 {sTo}, 0
    {spin}:
    s_add_u32 {sTo}, {sTo}, 1
    s_cmp_gt_u32 {sTo}, {TIMEOUT}
    s_cbranch_scc1 {C.fail}
    buffer_load_dword {vF}, {vFa}, {ws}, 0 offen sc1
    s_waitcnt vmcnt(0)
    v_cmp_le_u32 vcc, {sS1}, {vF}
    s_cmp_eq_u64 vcc, -1
    s_cbranch_scc0 {spin}
    ''')
    mk.mark(0)
    for c in range(5):
        p(f'buffer_load_dwordx4 {X.sub(4 * c, 4)}, {v4}, {ws}, {t[3]} offen offset:{512 * c} sc1')
        for q in range(np_):
            p(f's_add_u32 {t[2]}, {t[1]}, {q * L.SEG_X4 + c * 16384}')
            p(f'buffer_load_dwordx4 {D[q].sub(4 * c, 4)}, {vP}, {ws}, {t[2]} offen sc1')
    for c in range(5):
        p(f's_waitcnt vmcnt({(4 - c) * (np_ + 1)})')
        for q in range(np_):
            for r in range(4 * c, 4 * c + 4):
                p(f'v_add_f32 {X[r]}, {X[r]}, {D[q][r]}')
    p(f's_add_u32 {t[2]}, {t[0]}, {L.XA if kind == 1 else L.XR[1]}\ns_lshr_b32 {t[1]}, {t[0]}, 1\ns_add_u32 {t[1]}, {t[1]}, {L.XAN if kind == 1 else L.XN[1]}')
    for c in range(5):
        p(f'buffer_store_dwordx4 {X.sub(4 * c, 4)}, {v4}, {ws}, {t[2]} offen offset:{512 * c} sc1')
    layer_norm(p, X, D[0], ob, a, b, sInv)
    for c in range(5):
        p(f'buffer_store_dwordx2 {ob.sub(2 * c, 2)}, {v2}, {ws}, {t[1]} offen offset:{256 * c} sc1')
    barrier_publish(p, C, vF, sS1, sFlag)
    mk.mark(2)
    mk.value(3, sS)
    mk.flush()
    p(f's_mov_b32 {sS}, {sS1}\ns_cmp_lt_u32 {sS}, {L.NSEG}\ns_cbranch_scc1 {top}\ns_endpgm')


def gen_prologue():
    p = Prog()
    V = Alloc('v', 1, 128)
    v4, v2, a, b = (V.get(1) for _ in range(4))
    X, D, ob, c4 = V.get(20, 2), V.get(20, 2), V.get(10, 2), V.get(4, 2)
    assert L.XB == L.FLAGS + L.FLAGS_BYTES and 256 * 12288 >= L.SENT_END - L.XB
    p(f'''
    s_cmp_ge_u32 s2, 256
    s_cbranch_scc1 L_pro_exit
    s_load_dwordx2 s[4:5], s[0:1], 0
    s_load_dwordx2 s[8:9], s[0:1], 104
    v_lshrrev_b32 {a}, 5, v0
    s_lshl_b32 s20, s2, 3
    v_add_u32 {a}, s20, {a}
    v_mul_u32_u24 {v2}, 1280, {a}
    v_and_b32 {b}, 31, v0
    v_lshl_add_u32 {v2}, {b}, 3, {v2}
    v_lshlrev_b32 {v4}, 1, {v2}
    s_mov_b32 s21, {INV640:#x}
    s_waitcnt lgkmcnt(0)
    s_mov_b32 s6, {2048 * 1280}
    s_mov_b32 s7, 0x20000
    s_mov_b32 s10, 0x10000000
    s_mov_b32 s11, 0x20000
    s_mov_b32 s12, s8
    s_mov_b32 s13, s9
    s_mov_b32 s14, {L.SENT_END}
    s_mov_b32 s15, 0x20000
    ''')
    for c in range(5):
        p(f'buffer_load_dwordx2 {ob.sub(2 * c, 2)}, {v2}, s[4:7], 0 offen offset:{256 * c}')
    for r in range(4):
        p(f'v_mov_b32 {c4[r]}, -1')
    p(f'v_lshlrev_b32 {a}, 4, v0\ns_mul_i32 s20, s2, 12288\ns_add_u32 s20, s20, {L.XB}')
    for i in range(3):
        p(f'buffer_store_dwordx4 {c4}, {a}, s[12:15], s20 offen\ns_add_u32 s20, s20, 4096')
    p(f's_cmp_ge_u32 s2, {L.FLAGS_BYTES // 4096}\ns_cbranch_scc1 L_pro_nf')
    for r in range(4):
        p(f'v_mov_b32 {D[r]}, 0')
    p(f's_lshl_b32 s20, s2, 12\ns_add_u32 s20, s20, {L.FLAGS}\nbuffer_store_dwordx4 {D.sub(0, 4)}, {a}, s[12:15], s20 offen')
    p.label('L_pro_nf')
    p('s_waitcnt vmcnt(0)')
    for i in range(10):
        p(f'v_lshlrev_b32 {X[2 * i]}, 16, {ob[i]}\nv_and_b32 {X[2 * i + 1]}, 0xffff0000, {ob[i]}')
    p(f's_mov_b32 s20, {L.XR[0]}\ns_mov_b32 s22, {L.XN[0]}')
    for c in range(5):
        p(f'buffer_store_dwordx4 {X.sub(4 * c, 4)}, {v4}, s[8:11], s20 offen offset:{512 * c}')
    layer_norm(p, X, D, ob, a, b, 's21')
    for c in range(5):
        p(f'buffer_store_dwordx2 {ob.sub(2 * c, 2)}, {v2}, s[8:11], s22 offen offset:{256 * c}')
    p.label('L_pro_exit')
    p('s_endpgm')
    return p, V.high + 1
```
